```python
import torch

def _softmax(x, axis=-1):
    return torch.softmax(x, dim=axis)

def _gelu(x):
    return torch.nn.functional.gelu(x, approximate='tanh')

def _silu(x):
    return torch.nn.functional.silu(x)

def _sigmoid(x):
    return torch.sigmoid(x)

def _layernorm(x, axis=-1, eps=1e-05):
    m = x.mean(dim=axis, keepdim=True)
    v = x.var(dim=axis, keepdim=True, unbiased=False)
    return (x - m) / torch.sqrt(v + eps)

def _scatter_add(tgt, idx, src, axis=0):
    return tgt.clone().index_add_(axis, idx, src)

def _segment_sum(src, seg, n):
    out = torch.zeros((n,) + src.shape[1:], dtype=src.dtype)
    return out.index_add_(0, seg, src)

def _pad(x, pw):
    flat = tuple((v for pair in reversed(pw) for v in pair))
    return torch.nn.functional.pad(x, flat)
kernel_name = 'adaLN_cond__ssm_conv_s4__dense_activation_squared_relu__prompt'

def setup_inputs():

    _w = lambda a: (lambda t: t.to(torch.bfloat16) if t.is_floating_point() else t)(torch.as_tensor(a))

    def _A_setup():
        B, L, D, N = (1, 2048, 512, 128)
        A_re = -(lambda _x: torch.exp(torch.as_tensor(_x)))((lambda *s: torch.randn(*s, dtype=torch.bfloat16) * 12.8)(D, N))
        A_im = torch.pi * (lambda *s: torch.randn(*s, dtype=torch.bfloat16) * 0.1)(D, N)
        B_re = (lambda *s: torch.randn(*s, dtype=torch.bfloat16) * 0.2)(D, N)
        B_im = (lambda *s: torch.randn(*s, dtype=torch.bfloat16) * 0.2)(D, N)
        C_re = (lambda *s: torch.randn(*s, dtype=torch.bfloat16) * 0.2)(D, N)
        C_im = (lambda *s: torch.randn(*s, dtype=torch.bfloat16) * 0.2)(D, N)
        log_dt = (lambda *s: torch.randn(*s, dtype=torch.bfloat16) * 0.1)(D) * 0.5 - 4.0
        Dskip = (lambda *s: torch.randn(*s, dtype=torch.bfloat16) * 0.1)(D)
        return {'u': _w((lambda *s: torch.randn(*s, dtype=torch.bfloat16) * 0.05)(B, L, D)), 'A_re': _w(A_re), 'A_im': _w(A_im), 'B_re': _w(B_re), 'B_im': _w(B_im), 'C_re': _w(C_re), 'C_im': _w(C_im), 'log_dt': _w(log_dt), 'Dskip': _w(Dskip)}
    _A_in = _A_setup()

    def _B_setup():
        B, S, D, F = (1, 2048, 512, 1792)
        return {'x': _w((lambda *s: torch.randn(*s, dtype=torch.bfloat16) * 0.05)(B, S, D)), 'w1': _w((lambda *s: torch.randn(*s, dtype=torch.bfloat16) * 0.05)(D, F)), 'b1': _w((lambda *s: torch.randn(*s, dtype=torch.bfloat16) * 1.6)(F)), 'w2': _w((lambda *s: torch.randn(*s, dtype=torch.bfloat16) * 0.05)(F, D)), 'b2': _w((lambda *s: torch.randn(*s, dtype=torch.bfloat16) * 12.8)(D))}
    _B_in = _B_setup()
    return {'A_u': _A_in['u'], 'A_A_re': _A_in['A_re'], 'A_A_im': _A_in['A_im'], 'A_B_re': _A_in['B_re'], 'A_B_im': _A_in['B_im'], 'A_C_re': _A_in['C_re'], 'A_C_im': _A_in['C_im'], 'A_log_dt': _A_in['log_dt'], 'A_Dskip': _A_in['Dskip'], 'B_x': _B_in['x'], 'B_w1': _B_in['w1'], 'B_b1': _B_in['b1'], 'B_w2': _B_in['w2'], 'B_b2': _B_in['b2'], 'c': _w((lambda *s: torch.randn(*s, dtype=torch.bfloat16) * 0.2)(1, 512) * 8.0), 'w_mod': _w((lambda *s: torch.randn(*s, dtype=torch.bfloat16) * 0.2)(512, 6 * 512) * 512 ** (-0.5) * 8.0)}

def reference(A_u, A_A_re, A_A_im, A_B_re, A_B_im, A_C_re, A_C_im, A_log_dt, A_Dskip, B_x, B_w1, B_b1, B_w2, B_b2, c, w_mod):

    def _A_ref(u, A_re, A_im, B_re, B_im, C_re, C_im, log_dt, Dskip):
        Bsz, L, D = u.shape
        dt = torch.exp(log_dt)[:, None]
        A = A_re + 1j * A_im
        Bc = B_re + 1j * B_im
        Cc = C_re + 1j * C_im
        logdA = dt * A
        dB = dt * Bc
        l = (lambda x, dt: x.to(dt))(torch.arange(L), A_re.dtype)
        P = torch.exp(logdA[:, :, None] * l[None, None, :])
        K = torch.einsum('dn,dnl,dn->dl', Cc, P, dB).real
        L2 = 2 * L
        Kp = _pad(K, ((0, 0), (0, L)))
        up = (lambda x, *d: x.permute(*d))(u, 0, 2, 1)
        up = _pad(up, ((0, 0), (0, 0), (0, L)))
        Kf = (lambda x, axes=(-2, -1): torch.fft.rfft2(x.float(), dim=axes))(Kp[:, None, :], axes=(-2, -1))
        Uf = (lambda x, axes=(-2, -1): torch.fft.rfft2(x.float(), dim=axes))(up[:, :, None, :], axes=(-2, -1))
        Yf = Uf * Kf[None, :, :, :]
        y = (lambda x, s, axes=(-2, -1): torch.fft.irfft2(x, s=s, dim=axes).to(torch.bfloat16))(Yf, (1, L2), axes=(-2, -1))[:, :, 0, :L]
        y = (lambda x, *d: x.permute(*d))(y, 0, 2, 1) + u * Dskip[None, None, :]
        return y

    def _B_ref(x, w1, b1, w2, b2):
        h = torch.einsum('bsd,df->bsf', x, w1) + b1
        zero = torch.zeros_like(h)
        r = torch.where(h > zero, h, zero)
        h = r * r
        out = torch.einsum('bsf,fd->bsd', h, w2) + b2
        return out
    x = A_u
    mod = (_silu(c) @ w_mod).reshape(c.shape[0], 6, 1, -1)
    sa, ca, ga, sb, cb, gb = (mod[:, 0].clone(), mod[:, 1].clone(), mod[:, 2].clone(), mod[:, 3].clone(), mod[:, 4].clone(), mod[:, 5].clone())
    h = _layernorm(x, axis=-1) * (1 + ca) + sa
    x = x + ga * _A_ref(h, A_A_re, A_A_im, A_B_re, A_B_im, A_C_re, A_C_im, A_log_dt, A_Dskip)
    h = _layernorm(x, axis=-1) * (1 + cb) + sb
    x = x + gb * _B_ref(h, B_w1, B_b1, B_w2, B_b2)
    return x
```

```python
L = []
def E(s): L.append("    " + s)
def LBL(s): L.append(s + ":")
def C(s): L.append("    ; " + s)
MOD, S1, S2, XT, KG, X1T, W1P, W2P, HP = 0x0, 0x4000, 0x6000, 0x10000, 0x500000, 0xA00000, 0xC00000, 0xE00000, 0x1000000
WSB = 0x2000000
KPAR, KCH = 4160, 8320
def vr(a, n): return f"v[{a}:{a+n-1}]"
def srd(d, karg_off, nbytes):
    E(f"s_load_dwordx2 s[{d}:{d+1}], s[0:1], {karg_off}")
    E(f"s_mov_b32 s{d+2}, {hex(nbytes)}")
    E(f"s_mov_b32 s{d+3}, 0x00020000")
def head(name):
    L.append(f".globl {name}\n.p2align 8\n.type {name},@function\n{name}:")
def lo(d, s): E(f"v_lshlrev_b32 v{d}, 16, v{s}")
def hi(d, s): E(f"v_and_b32 v{d}, 0xffff0000, v{s}")
def rnd(d, s):
    E(f"v_cvt_pk_bf16_f32 v{d}, v{s}, v{s}"); hi(d, d)
def wavesum(regs):
    steps = ["row_shr:1 row_mask:0xf bank_mask:0xf bound_ctrl:0", "row_shr:2 row_mask:0xf bank_mask:0xf bound_ctrl:0",
             "row_shr:4 row_mask:0xf bank_mask:0xf bound_ctrl:0", "row_shr:8 row_mask:0xf bank_mask:0xf bound_ctrl:0",
             "row_bcast:15 row_mask:0xa bank_mask:0xf", "row_bcast:31 row_mask:0xc bank_mask:0xf"]
    E("s_nop 1")
    for st in steps:
        for r in regs: E(f"v_add_f32_dpp v{r}, v{r}, v{r} {st}")
        if len(regs) < 3: E("s_nop 1")
    E("s_nop 1")

def k_prep():
    head("prep_kernel")
    srd(4, 144, WSB)
    E("s_cmp_lt_u32 s2, 48"); E("s_cbranch_scc1 P_MOD")
    E("s_cmp_lt_u32 s2, 176"); E("s_cbranch_scc1 P_LN")
    E("s_cmp_lt_u32 s2, 232"); E("s_cbranch_scc1 P_W2")
    E("s_cmp_lt_u32 s2, 744"); E("s_cbranch_scc1 P_KG")
    E("s_endpgm")
    LBL("P_MOD")
    srd(8, 120, 512*3072*2); srd(12, 112, 1024)
    E("v_and_b32 v1, 7, v0"); E("v_lshrrev_b32 v2, 3, v0")
    E("s_mov_b32 s16, 98304")
    E("v_mul_lo_u32 v3, v2, s16"); E("v_lshl_add_u32 v3, v1, 4, v3")
    E("s_lshl_b32 s17, s2, 7")
    E("v_lshlrev_b32 v4, 5, v2")
    E("s_waitcnt lgkmcnt(0)")
    E("buffer_load_dwordx4 v[8:11], v4, s[12:15], 0 offen")
    E("buffer_load_dwordx4 v[12:15], v4, s[12:15], 0 offen offset:16")
    for i in range(16):
        E(f"buffer_load_dwordx4 {vr(48+4*i,4)}, v3, s[8:11], s17 offen")
        E("s_add_u32 s17, s17, 6144")
    E("s_waitcnt vmcnt(16)")
    for i in range(8): lo(16+2*i, 8+i); hi(17+2*i, 8+i)
    for i in range(16): E(f"v_mul_f32 v{32+i}, 0xbfb8aa3b, v{16+i}")
    for i in range(16): E(f"v_exp_f32 v{32+i}, v{32+i}")
    for i in range(16): E(f"v_add_f32 v{32+i}, 1.0, v{32+i}")
    for i in range(16): E(f"v_rcp_f32 v{32+i}, v{32+i}")
    for i in range(16): E(f"v_mul_f32 v{16+i}, v{16+i}, v{32+i}")
    for i in range(16): rnd(16+i, 16+i)
    for j in range(8): E(f"v_mov_b32 v{32+j}, 0")
    for i in range(16):
        E(f"s_waitcnt vmcnt({15-i})")
        for j in range(4): lo(40+2*j, 48+4*i+j); hi(41+2*j, 48+4*i+j)
        for j in range(8): E(f"v_fmac_f32 v{32+j}, v{40+j}, v{16+i}")
    E("v_lshlrev_b32 v5, 5, v0")
    E("ds_write_b128 v5, v[32:35]"); E("ds_write_b128 v5, v[36:39] offset:16")
    E("s_waitcnt lgkmcnt(0)"); E("s_barrier")
    E("v_and_b32 v6, 63, v0"); E("v_lshlrev_b32 v6, 2, v6")
    for i in range(32): E(f"ds_read_b32 v{48+i}, v6 offset:{256*i}")
    E("s_waitcnt lgkmcnt(0)")
    for st in (16, 8, 4, 2, 1):
        for i in range(st): E(f"v_add_f32 v{48+i}, v{48+i}, v{48+i+st}")
    rnd(48, 48)
    E("s_lshl_b32 s17, s2, 8")
    E(f"buffer_store_dword v48, v6, s[4:7], s17 offen")
    E("s_endpgm")
    LBL("P_LN")
    srd(8, 0, 2048*512*2)
    E("s_sub_u32 s16, s2, 48")
    E("v_lshrrev_b32 v1, 6, v0"); E("v_and_b32 v2, 63, v0")
    E("v_lshlrev_b32 v3, 12, v1"); E("v_lshl_add_u32 v3, v2, 4, v3")
    E("s_lshl_b32 s17, s16, 14")
    E("s_waitcnt lgkmcnt(0)")
    for r in range(4): E(f"buffer_load_dwordx4 {vr(8+4*r,4)}, v3, s[8:11], s17 offen offset:{1024*r}")
    for r in range(4):
        E(f"s_waitcnt vmcnt({3-r})")
        for j in range(4): lo(32+8*r+2*j, 8+4*r+j); hi(33+8*r+2*j, 8+4*r+j)
        E(f"v_add_f32 v{24+r}, v{32+8*r}, v{33+8*r}")
        for j in range(2, 8): E(f"v_add_f32 v{24+r}, v{24+r}, v{32+8*r+j}")
    wavesum([24, 25, 26, 27])
    for r in range(4): E(f"v_readlane_b32 s{20+r}, v{24+r}, 63")
    E("s_nop 1")
    for r in range(4): E(f"v_mov_b32 v{24+r}, s{20+r}")
    for r in range(4): E(f"v_mul_f32 v{24+r}, 0x3b000000, v{24+r}")
    for r in range(4):
        E(f"v_mov_b32 v{28+r}, 0")
        for j in range(8):
            E(f"v_sub_f32 v64, v{32+8*r+j}, v{24+r}"); E(f"v_fmac_f32 v{28+r}, v64, v64")
    wavesum([28, 29, 30, 31])
    for r in range(4): E(f"v_readlane_b32 s{20+r}, v{28+r}, 63")
    E("s_nop 1")
    for r in range(4): E(f"v_mov_b32 v{28+r}, s{20+r}")
    for r in range(4): E(f"v_mul_f32 v{28+r}, 0x3b000000, v{28+r}")
    for r in range(4): rnd(28+r, 28+r); rnd(24+r, 24+r)
    for r in range(4): E(f"v_add_f32 v{28+r}, 0x3727c5ac, v{28+r}")
    for r in range(4): rnd(28+r, 28+r)
    for r in range(4): E(f"v_sqrt_f32 v{28+r}, v{28+r}")
    for r in range(4): rnd(28+r, 28+r)
    for r in range(4): E(f"v_rcp_f32 v{28+r}, v{28+r}")
    E("s_nop 0")
    for r in range(4):
        for j in range(0, 8, 2):
            a = 32+8*r+j
            E(f"v_sub_f32 v64, v{a}, v{24+r}"); E(f"v_sub_f32 v65, v{a+1}, v{24+r}")
            E("v_cvt_pk_bf16_f32 v66, v64, v65"); lo(64, 66); hi(65, 66)
            E(f"v_mul_f32 v64, v64, v{28+r}"); E(f"v_mul_f32 v65, v65, v{28+r}")
            E(f"v_cvt_pk_bf16_f32 v{72+4*j+r}, v64, v{a}")
            E(f"v_cvt_pk_bf16_f32 v{72+4*(j+1)+r}, v65, v{a+1}")
    E("v_mul_u32_u24 v4, 528, v2"); E("v_lshl_add_u32 v4, v1, 4, v4")
    for j in range(8): E(f"ds_write_b128 v4, {vr(72+4*j,4)} offset:{64*j}")
    E("s_waitcnt lgkmcnt(0)"); E("s_barrier")
    E("v_and_b32 v5, 3, v0"); E("v_lshrrev_b32 v6, 2, v0")
    E("v_lshrrev_b32 v7, 3, v6"); E("v_mul_u32_u24 v7, 528, v7")
    E("v_and_b32 v4, 7, v6"); E("v_lshl_add_u32 v7, v4, 6, v7"); E("v_lshl_add_u32 v7, v5, 4, v7")
    for i in range(8): E(f"ds_read_b128 {vr(72+4*i,4)}, v7 offset:{528*8*i}")
    E("v_lshlrev_b32 v6, 13, v6"); E("v_lshl_add_u32 v6, v5, 4, v6")
    E("s_lshl_b32 s17, s16, 6"); E(f"s_add_u32 s17, s17, {hex(XT)}")
    for i in range(8):
        E(f"s_waitcnt lgkmcnt({7-i})")
        E(f"buffer_store_dwordx4 {vr(72+4*i,4)}, v6, s[4:7], s17 offen")
        E("s_add_u32 s17, s17, 0x80000")
    E("s_endpgm")
    LBL("P_W2")
    srd(8, 96, 1792*512*2)
    E("s_sub_u32 s16, s2, 176")
    E("v_lshrrev_b32 v1, 6, v0"); E("v_and_b32 v2, 63, v0")
    E("v_lshrrev_b32 v3, 1, v1"); E("v_and_b32 v4, 1, v1")
    E("v_lshlrev_b32 v5, 14, v3"); E("v_lshl_add_u32 v5, v4, 12, v5"); E("v_lshl_add_u32 v5, v2, 4, v5")
    E("s_lshl_b32 s17, s16, 15"); E("s_add_u32 s18, s17, 8192")
    E("s_mov_b32 s20, 0x05040100"); E("s_mov_b32 s21, 0x07060302")
    E("s_waitcnt lgkmcnt(0)")
    for e in range(8): E(f"buffer_load_dwordx4 {vr(8+4*e,4)}, v5, s[8:11], s{17+(e>>2)} offen offset:{1024*(e&3)}")
    E("v_lshrrev_b32 v6, 2, v2"); E("v_mul_u32_u24 v6, 112, v6"); E("v_add_u32 v6, v6, v3")
    E("v_lshlrev_b32 v6, 10, v6"); E("v_and_b32 v7, 3, v2"); E("v_lshl_add_u32 v6, v7, 7, v6"); E("v_lshl_add_u32 v6, v4, 9, v6")
    E("s_lshl_b32 s17, s16, 11"); E(f"s_add_u32 s17, s17, {hex(W2P)}")
    E("s_waitcnt vmcnt(0)")
    for dd in range(8):
        for ep in range(4):
            E(f"v_perm_b32 v{40+4*dd+ep}, v{8+4*(2*ep+1)+(dd>>1)}, v{8+4*(2*ep)+(dd>>1)}, s{20+(dd&1)}")
        E(f"buffer_store_dwordx4 {vr(40+4*dd,4)}, v6, s[4:7], s17 offen offset:{16*dd}")
    E("s_endpgm")
    LBL("P_KG")
    PAR = 12288
    for i in range(6): srd(8+4*i, 8+8*i, 512*128*2)
    srd(32, 56, 1024)
    E("s_sub_u32 s16, s2, 232") if False else None
    E("s_sub_u32 s36, s2, 232")
    E("v_and_b32 v1, 127, v0"); E("v_lshlrev_b32 v2, 1, v1")
    E("s_lshl_b32 s37, s36, 8"); E("s_lshl_b32 s38, s36, 1")
    E("v_mov_b32 v3, 0")
    E("s_waitcnt lgkmcnt(0)")
    for i in range(6): E(f"buffer_load_ushort v{8+i}, v2, s[{8+4*i}:{11+4*i}], s37 offen")
    E("buffer_load_ushort v14, v3, s[32:35], s38 offen")
    for i in range(4): E(f"v_mov_b32 v{16+i}, 0")
    E("v_lshlrev_b32 v4, 4, v0")
    for i in range(3): E(f"ds_write_b128 v4, v[16:19] offset:{4096*i}")
    E("v_and_b32 v5, 63, v0"); E("v_lshrrev_b32 v6, 6, v0")
    E("v_and_b32 v20, 3, v5"); E("v_bfe_u32 v21, v5, 2, 2")
    E("v_and_b32 v22, 15, v5"); E("v_lshrrev_b32 v23, 4, v5")
    E("v_lshlrev_b32 v24, 7, v22"); E("v_cvt_f32_u32 v24, v24")
    E("s_mov_b32 s40, 0x06020404"); E("v_lshlrev_b32 v25, 3, v20"); E("v_lshrrev_b32 v25, v25, s40"); E("v_and_b32 v25, 7, v25")
    E("v_cmp_eq_u32 vcc, 1, v20"); E("v_mov_b32 v26, 0"); E("v_mov_b32 v27, 512"); E("v_cndmask_b32 v26, v26, v27, vcc")
    E("v_add_u32 v25, v25, v26"); E("v_lshl_add_u32 v25, v21, 7, v25"); E("v_cvt_f32_u32 v25, v25")
    E("v_lshlrev_b32 v26, 7, v21"); E("v_add_u32 v27, 2045, v21"); E("v_cmp_lt_u32 vcc, 1, v21"); E("s_nop 1"); E("v_cndmask_b32 v26, v26, v27, vcc")
    E("v_lshl_add_u32 v26, v20, 1, v26"); E("v_add_u32 v26, 1, v26"); E("v_cvt_f32_u32 v26, v26")
    E("v_lshlrev_b32 v27, 3, v22"); E("v_cvt_f32_u32 v27, v27")
    E("s_waitcnt vmcnt(0)")
    for i in range(7): lo(8+i, 8+i)
    E("v_mul_f32 v14, 0x3fb8aa3b, v14"); E("v_exp_f32 v14, v14"); E("s_nop 0"); rnd(14, 14)
    E("v_mul_f32 v16, v14, v8"); E("v_mul_f32 v16, 0x3fb8aa3b, v16")
    E("v_mul_f32 v17, v14, v9"); E("v_mul_f32 v17, 0.15915494, v17")
    E("v_mul_f32 v10, v14, v10"); E("v_mul_f32 v11, v14, v11")
    E("v_mul_f32 v18, v12, v10"); E("v_fma_f32 v18, -v13, v11, v18")
    E("v_mul_f32 v19, v12, v11"); E("v_fmac_f32 v19, v13, v10")
    E("v_lshlrev_b32 v4, 4, v1")
    E(f"ds_write_b128 v4, v[16:19] offset:{PAR}")
    E("s_waitcnt lgkmcnt(0)"); E("s_barrier")
    E("v_lshlrev_b32 v4, 9, v6"); E("v_lshl_add_u32 v4, v23, 6, v4")
    for s in range(2):
        for q in range(4): E(f"ds_read_b128 {vr(32+16*s+4*q,4)}, v4 offset:{PAR+256*s+16*q}")
    for s in range(2):
        E(f"s_waitcnt lgkmcnt({4*(1-s)})")
        for q in range(4):
            p = 32+16*s+4*q
            for t in range(4):
                E(f"v_mul_f32 v{64+t}, v{p}, v{24+t}"); E(f"v_mul_f32 v{68+t}, v{p+1}, v{24+t}")
            for t in range(4): E(f"v_fract_f32 v{68+t}, v{68+t}")
            for t in range(4): E(f"v_exp_f32 v{64+t}, v{64+t}")
            for t in range(4): E(f"v_cos_f32 v{72+t}, v{68+t}")
            for t in range(4): E(f"v_sin_f32 v{68+t}, v{68+t}")
            for t in range(4): E(f"v_mul_f32 v{72+t}, v{72+t}, v{64+t}")
            for t in range(4): E(f"v_mul_f32 v{68+t}, v{68+t}, v{64+t}")
            for t in range(3): E(f"v_cvt_pk_bf16_f32 v{80+4*t+q}, v{72+t}, v{68+t}")
            E(f"v_mul_f32 v64, v{p+2}, v75"); E(f"v_fma_f32 v64, -v{p+3}, v71, v64")
            E(f"v_mul_f32 v65, v{p+2}, v71"); E(f"v_fmac_f32 v65, v{p+3}, v75")
            E(f"v_cvt_pk_bf16_f32 v{92+q}, v64, -v65")
        E("s_nop 1")
        for t in range(3):
            E(f"v_mfma_f32_16x16x32_bf16 {vr(96+4*t,4)}, {vr(80+4*t,4)}, v[92:95], " + ("0" if s == 0 else vr(96+4*t,4)))
    E("v_mul_u32_u24 v28, 36, v22")
    E("v_mul_u32_u24 v29, 2304, v23"); E("v_add_u32 v29, v29, v28")
    E("v_mul_u32_u24 v30, 576, v23"); E("v_add_u32 v30, v30, v28")
    E("v_lshlrev_b32 v31, 2, v23"); E("v_add_u32 v31, 9204, v31"); E("v_add_u32 v31, v31, v28")
    E("v_cmp_lt_u32 vcc, 1, v23"); E("s_nop 1"); E("v_cndmask_b32 v31, v30, v31, vcc")
    E("s_nop 4")
    for r in range(4): E(f"ds_add_f32 v29, v{96+r} offset:{576*r}")
    for r in range(4): E(f"ds_add_f32 v30, v{100+r} offset:{4*[4,580,2,6][r]}")
    for r in range(4): E(f"ds_add_f32 v31, v{104+r} offset:{4*(1+2*r)}")
    E("v_lshlrev_b32 v7, 3, v0"); E("v_sub_u32 v7, 2047, v7")
    for e in range(9):
        E(f"v_subrev_u32 v{32+e}, {e}, v7"); E(f"v_max_i32 v{32+e}, 0, v{32+e}"); E(f"v_cvt_f32_u32 v{32+e}, v{32+e}")
    for e in range(9): rnd(32+e, 32+e)
    for e in range(9):
        E(f"v_cvt_u32_f32 v{32+e}, v{32+e}"); E(f"v_lshrrev_b32 v44, 3, v{32+e}"); E(f"v_add_lshl_u32 v{32+e}, v{32+e}, v44, 2")
    E("s_waitcnt lgkmcnt(0)"); E("s_barrier")
    for e in range(9): E(f"ds_read_b32 v{48+e}, v{32+e}")
    E("v_cmp_gt_u32 vcc, 255, v0")
    E("s_mul_i32 s37, s36, %d" % KCH); E(f"s_add_u32 s37, s37, {hex(KG)}")
    E("v_lshlrev_b32 v4, 4, v0")
    E("v_and_b32 v5, 1, v0"); E("v_mul_u32_u24 v5, %d, v5" % KPAR)
    for i in range(4): E(f"v_mov_b32 v{16+i}, 0")
    E("s_waitcnt lgkmcnt(0)")
    E("v_cndmask_b32 v56, 0, v56, vcc")
    for i in range(4):
        E(f"v_cvt_pk_bf16_f32 v{60+i}, v{48+2*i}, v{49+2*i}"); E(f"v_cvt_pk_bf16_f32 v{64+i}, v{49+2*i}, v{50+2*i}")
    E("buffer_store_dwordx4 v[60:63], v4, s[4:7], s37 offen")
    E("s_add_u32 s38, s37, %d" % KPAR)
    E("buffer_store_dwordx4 v[64:67], v4, s[4:7], s38 offen")
    E("s_add_u32 s38, s37, 4096")
    E("buffer_store_dwordx4 v[16:19], v5, s[4:7], s38 offen")
    E("s_endpgm")
```

```python
from gen1 import *
CS = 4160
def k_conv():
    head("conv_kernel")
    srd(4, 144, WSB)
    E("s_cmp_lt_u32 s2, 56"); E("s_cbranch_scc1 C_W1")
    E("s_cmp_lt_u32 s2, 568"); E("s_cbranch_scc1 C_CV")
    E("s_endpgm")
    LBL("C_W1")
    srd(8, 80, 512*1792*2); srd(12, 88, 1792*2)
    E("v_and_b32 v1, 3, v0"); E("v_lshrrev_b32 v2, 2, v0")
    E("v_mul_u32_u24 v3, 28672, v2"); E("v_lshl_add_u32 v3, v1, 4, v3")
    E("s_lshl_b32 s17, s2, 6")
    E("v_lshlrev_b32 v4, 5, v2")
    E("s_waitcnt lgkmcnt(0)")
    E(f"s_mov_b32 s18, {MOD+4*512*4}"); E(f"s_mov_b32 s19, {MOD+3*512*4}")
    E("buffer_load_dwordx4 v[8:11], v4, s[4:7], s18 offen"); E("buffer_load_dwordx4 v[12:15], v4, s[4:7], s18 offen offset:16")
    E("buffer_load_dwordx4 v[16:19], v4, s[4:7], s19 offen"); E("buffer_load_dwordx4 v[20:23], v4, s[4:7], s19 offen offset:16")
    for e in range(8):
        E(f"buffer_load_dwordx4 {vr(24+4*e,4)}, v3, s[8:11], s17 offen"); E("s_add_u32 s17, s17, 3584")
    E("v_and_b32 v5, 31, v0"); E("v_lshlrev_b32 v5, 1, v5"); E("s_lshl_b32 s17, s2, 6")
    E("buffer_load_ushort v7, v5, s[12:15], s17 offen")
    E("v_lshlrev_b32 v6, 9, v2"); E("v_lshl_add_u32 v6, v1, 7, v6")
    E("s_lshl_b32 s17, s2, 15"); E(f"s_add_u32 s17, s17, {hex(W1P)}")
    E("s_mov_b32 s20, 0x3f803f80")
    E("s_waitcnt vmcnt(9)")
    for e in range(8): E(f"v_add_f32 v{8+e}, 1.0, v{8+e}")
    for e in range(8): rnd(8+e, 8+e)
    for i in range(16): E(f"v_mov_b32 v{96+i}, 0")
    E("s_waitcnt vmcnt(1)")
    for ff in range(8):
        for e in range(8): (hi if ff & 1 else lo)(56+e, 24+4*e+(ff >> 1))
        for e in range(8): E(f"v_fmac_f32 v{104+ff}, v{56+e}, v{16+e}")
        for e in range(8): E(f"v_mul_f32 v{56+e}, v{56+e}, v{8+e}")
        for ep in range(4): E(f"v_cvt_pk_bf16_f32 v{64+4*ff+ep}, v{56+2*ep}, v{57+2*ep}")
        E(f"buffer_store_dwordx4 {vr(64+4*ff,4)}, v6, s[4:7], s17 offen offset:{16*ff}")
        for ep in range(4): E(f"v_dot2_f32_bf16 v{96+ff}, v{64+4*ff+ep}, s20, v{96+ff}")
    E("s_nop 3")
    E("v_lshlrev_b32 v4, 5, v0")
    E("ds_write_b128 v4, v[96:99]"); E("ds_write_b128 v4, v[100:103] offset:16")
    E("ds_write_b128 v4, v[104:107] offset:8192"); E("ds_write_b128 v4, v[108:111] offset:8208")
    E("s_waitcnt lgkmcnt(0)"); E("s_barrier")
    E("v_bfe_u32 v1, v0, 5, 1"); E("v_lshlrev_b32 v5, 1, v5"); E("v_lshl_add_u32 v5, v1, 13, v5")
    for i in range(64): E(f"ds_read_b32 v{8+i}, v5 offset:{128*i}")
    E("s_waitcnt lgkmcnt(0) vmcnt(0)")
    for st in (32, 16, 8, 4, 2, 1):
        for i in range(st): E(f"v_add_f32 v{8+i}, v{8+i}, v{8+i+st}")
    lo(7, 7); E("v_cvt_f32_u32 v1, v1"); E("v_fmac_f32 v8, v7, v1")
    E("s_lshl_b32 s17, s2, 7"); E(f"s_add_u32 s17, s17, {hex(S1)}")
    E("buffer_store_dword v8, v5, s[4:7], s17 offen")
    E("s_endpgm")
    LBL("C_CV")
    U = 8*CS
    E("s_load_dwordx2 s[8:9], s[0:1], 64")
    E("s_sub_u32 s16, s2, 56")
    E("s_lshl_b32 s17, s16, 2"); E("s_and_b32 s18, s16, 0x1fe"); E("s_lshl_b32 s18, s18, 1")
    E("v_lshlrev_b32 v1, 5, v0"); E("v_lshlrev_b32 v2, 4, v0")
    E("s_lshl_b32 s19, s16, 13"); E(f"s_add_u32 s19, s19, {hex(XT)}")
    E("s_mul_i32 s20, s16, %d" % KCH); E(f"s_add_u32 s20, s20, {hex(KG)}"); E("s_add_u32 s21, s20, %d" % KPAR)
    E("s_add_u32 s22, s17, 2048"); E("s_add_u32 s23, s17, 4096")
    E("s_waitcnt lgkmcnt(0)")
    E("s_load_dword s24, s[4:5], s17"); E("s_load_dword s25, s[4:5], s22"); E("s_load_dword s26, s[4:5], s23")
    E("s_load_dword s27, s[8:9], s18")
    E("buffer_load_dwordx4 v[8:11], v1, s[4:7], s19 offen"); E("buffer_load_dwordx4 v[12:15], v1, s[4:7], s19 offen offset:16")
    for c in range(8):
        E(f"buffer_load_dwordx4 {vr(32+4*c,4)}, v2, s[4:7], s{20 if c&1 else 21} offen offset:{2*((7-c) if c&1 else (6-c))}")
    for i in range(4): E(f"v_mov_b32 v{4+i}, 0")
    E("v_min_u32 v3, 29, v0"); E("v_lshlrev_b32 v3, 4, v3")
    E(f"ds_write_b128 v3, v[4:7] offset:{U}")
    E("v_and_b32 v3, 7, v0"); E(f"v_mul_u32_u24 v3, {CS}, v3")
    E("ds_write_b128 v3, v[4:7] offset:4096")
    E("v_and_b32 v64, 63, v0"); E("v_lshrrev_b32 v65, 6, v0")
    E("v_lshrrev_b32 v66, 4, v64"); E("v_bfe_u32 v67, v64, 3, 1")
    E("v_sub_u32 v68, v66, v67"); E("v_lshlrev_b32 v68, 4, v68"); E("v_add_u32 v68, v68, v3")
    E("v_lshlrev_b32 v69, 7, v65"); E("v_sub_u32 v68, v68, v69"); E(f"v_add_u32 v68, {4048-3584-64}, v68")
    E("v_and_b32 v70, 15, v64"); E("v_lshlrev_b32 v71, 5, v70"); E("v_lshl_add_u32 v71, v66, 4, v71")
    E("v_sub_u32 v69, v71, v69"); E(f"v_add_u32 v69, {U+448-64}, v69")
    E("v_lshlrev_b32 v71, 1, v71"); E("v_lshlrev_b32 v70, 4, v66"); E("v_sub_u32 v71, v71, v70"); E("v_lshl_add_u32 v71, v65, 13, v71")
    E("s_waitcnt lgkmcnt(0)")
    E("v_mov_b32 v72, s25"); E("v_add_f32 v72, 1.0, v72"); rnd(72, 72)
    E("s_and_b32 s28, s16, 1"); E("s_lshl_b32 s28, s28, 4"); E("s_lshr_b32 s27, s27, s28"); E("s_lshl_b32 s27, s27, 16")
    E("s_waitcnt vmcnt(8)")
    for e in range(8): lo(16+e, 8+e)
    for e in range(8): E(f"v_mul_f32 v{16+e}, v{16+e}, v72")
    for e in range(0, 8, 2):
        E(f"v_cvt_pk_bf16_f32 v24, v{16+e}, v{17+e}"); lo(16+e, 24); hi(17+e, 24)
    for e in range(8): E(f"v_add_f32 v{16+e}, s24, v{16+e}")
    for e in range(0, 8, 2): E(f"v_cvt_pk_bf16_f32 v{24+e//2}, v{16+e}, v{17+e}")
    E(f"ds_write_b128 v2, v[24:27] offset:{U+480}")
    for c in range(8):
        E(f"s_waitcnt vmcnt({7-c})"); E(f"ds_write_b128 v2, {vr(32+4*c,4)} offset:{CS*c}")
    E("s_waitcnt lgkmcnt(0)"); E("s_barrier")
    T0, B0, AC = 76, 108, 32
    for s in range(2):
        o = 64*(1-s)
        for q in range(8):
            E(f"ds_read_b128 {vr(T0+4*q,4)}, v68 offset:{o+(7-q)*512}")
            E(f"ds_read_b128 {vr(B0+4*q,4)}, v69 offset:{o+512*q}")
        done = set()
        for n in range(8):
            E(f"s_waitcnt lgkmcnt({2*(7-n)})")
            for q in range(n+1):
                for i in range(n+1):
                    if (q == n or i == n) and q+i <= 7:
                        J = q+i
                        c = "0" if (s == 0 and J not in done) else vr(AC+4*J, 4)
                        done.add(J)
                        E(f"v_mfma_f32_16x16x32_bf16 {vr(AC+4*J,4)}, {vr(T0+4*q,4)}, {vr(B0+4*i,4)}, {c}")
    E("s_barrier"); E("s_nop 7")
    for J in range(8): E(f"ds_write_b128 v71, {vr(AC+4*J,4)} offset:{1024*J}")
    E("s_waitcnt lgkmcnt(0)"); E("s_barrier")
    for w in range(4):
        E(f"ds_read_b128 {vr(32+8*w,4)}, v1 offset:{8192*w}"); E(f"ds_read_b128 {vr(36+8*w,4)}, v1 offset:{8192*w+16}")
    for e in range(0, 8, 2): lo(16+e, 24+e//2); hi(17+e, 24+e//2)
    for e in range(8): E(f"v_mul_f32 v{16+e}, s27, v{16+e}")
    def rnd8(b):
        for e in range(0, 8, 2):
            E(f"v_cvt_pk_bf16_f32 v28, v{b+e}, v{b+1+e}"); lo(b+e, 28); hi(b+1+e, 28)
    rnd8(16)
    for e in range(8): hi(8+e, 8+e)
    E("s_waitcnt lgkmcnt(0)")
    for e in range(8):
        E(f"v_add_f32 v{32+e}, v{32+e}, v{40+e}"); E(f"v_add_f32 v{48+e}, v{48+e}, v{56+e}")
    for e in range(8): E(f"v_add_f32 v{32+e}, v{32+e}, v{48+e}")
    rnd8(32)
    for e in range(8): E(f"v_add_f32 v{32+e}, v{32+e}, v{16+e}")
    rnd8(32)
    for e in range(8): E(f"v_mul_f32 v{32+e}, s26, v{32+e}")
    rnd8(32)
    for e in range(8): E(f"v_add_f32 v{32+e}, v{32+e}, v{8+e}")
    for e in range(0, 8, 2): E(f"v_cvt_pk_bf16_f32 v{24+e//2}, v{32+e}, v{33+e}")
    E("s_lshl_b32 s19, s16, 12"); E(f"s_add_u32 s19, s19, {hex(X1T)}")
    E("buffer_store_dwordx4 v[24:27], v2, s[4:7], s19 offen")
    E("s_endpgm")

def k_gemm1():
    head("gemm1_kernel")
    srd(4, 144, WSB)
    E("s_cmp_ge_u32 s2, 256"); E("s_cbranch_scc1 G1_END")
    E("s_and_b32 s16, s2, 7"); E("s_lshl_b32 s16, s16, 2"); E("s_bfe_u32 s17, s2, 0x20003"); E("s_add_u32 s16, s16, s17")
    E("s_lshr_b32 s17, s2, 5")
    E("v_lshrrev_b32 v1, 6, v0"); E("v_and_b32 v2, 63, v0"); E("s_nop 0")
    E("v_readfirstlane_b32 s18, v1")
    E("v_and_b32 v3, 7, v0"); E("v_lshrrev_b32 v4, 3, v0")
    E("v_lshlrev_b32 v5, 12, v4"); E("v_lshl_add_u32 v5, v3, 4, v5")
    E("s_lshl_b32 s19, s16, 7"); E(f"s_add_u32 s19, s19, {hex(X1T)}")
    E("s_waitcnt lgkmcnt(0)")
    for i in range(8):
        E(f"buffer_load_dwordx4 {vr(176+4*i,4)}, v5, s[4:7], s19 offen"); E("s_add_u32 s19, s19, 0x40000")
    E("v_lshlrev_b32 v6, 6, v4"); E("v_and_b32 v7, 3, v3"); E("v_lshl_add_u32 v6, v7, 4, v6")
    E("v_lshrrev_b32 v7, 2, v3"); E("v_lshl_add_u32 v6, v7, 15, v6")
    E("s_mul_i32 s20, s17, 7"); E("s_add_u32 s20, s20, s18")
    E("s_cmp_eq_u32 s18, 7"); E("s_cbranch_scc1 G1_ST")
    E("v_lshlrev_b32 v8, 4, v2")
    E("s_lshl_b32 s21, s20, 15"); E(f"s_add_u32 s21, s21, {hex(W1P)}")
    for k in range(32):
        E(f"buffer_load_dwordx4 {vr(48+4*k,4)}, v8, s[4:7], s21 offen offset:{1024*(k&3)}")
        if k & 3 == 3: E("s_add_u32 s21, s21, 4096")
    for i in range(8):
        E(f"s_waitcnt vmcnt({39-i})"); E(f"ds_write_b128 v6, {vr(176+4*i,4)} offset:{4096*i}")
    E("v_lshrrev_b32 v9, 5, v2"); E("v_lshlrev_b32 v9, 4, v9")
    E("s_lshl_b32 s21, s20, 7"); E(f"s_add_u32 s22, s21, {hex(S2)}"); E(f"s_add_u32 s21, s21, {hex(S1)}")
    E("s_waitcnt lgkmcnt(0)")
    for a in range(4):
        E(f"buffer_load_dwordx4 {vr(176+4*a,4)}, v9, s[4:7], s21 offen offset:{32*a}")
        E(f"buffer_load_dwordx4 {vr(192+4*a,4)}, v9, s[4:7], s22 offen offset:{32*a}")
    E("v_lshrrev_b32 v10, 5, v2"); E("v_lshlrev_b32 v10, 9, v10"); E("v_bfe_u32 v11, v2, 2, 2"); E("v_lshl_add_u32 v10, v11, 6, v10")
    E("v_bfe_u32 v11, v2, 4, 1"); E("v_lshl_add_u32 v10, v11, 5, v10"); E("v_and_b32 v11, 3, v2"); E("v_lshl_add_u32 v10, v11, 3, v10")
    E("s_barrier")
    BF = 208
    def rdB(k):
        b = BF + 8*(k % 4)
        for th in range(2):
            for h in range(2):
                E(f"ds_read_b64_tr_b16 {vr(b+4*th+2*h,2)}, v10 offset:{32768*th+1024*k+256*h}")
    for k in range(3): rdB(k)
    for k in range(32):
        if k+3 < 32: rdB(k+3)
        E(f"s_waitcnt vmcnt({8+31-k}) lgkmcnt({4*min(3, 31-k)})")
        for th in range(2):
            c = "0" if k == 0 else vr(16+16*th, 16)
            E(f"v_mfma_f32_32x32x16_bf16 {vr(16+16*th,16)}, {vr(48+4*k,4)}, {vr(BF+8*(k%4)+4*th,4)}, {c}")
    E("s_barrier")
    E("v_and_b32 v11, 31, v2"); E("v_lshlrev_b32 v11, 3, v11"); E("v_add_u32 v11, 0x10000, v11")
    E("ds_read_b64 v[12:13], v11"); E("ds_read_b64 v[14:15], v11 offset:256")
    E("s_mul_i32 s21, s16, 224"); E("s_lshl_b32 s22, s20, 1"); E("s_add_u32 s21, s21, s22"); E("s_lshl_b32 s21, s21, 10")
    E(f"s_add_u32 s21, s21, {hex(HP)}"); E(f"s_add_u32 s22, s21, {112*1024}")
    E("s_waitcnt vmcnt(0) lgkmcnt(0)"); E("s_nop 4")
    for th in range(2):
        a = 16+16*th
        for r in range(16): E(f"v_fma_f32 v{a+r}, -v{12+2*th}, v{176+r}, v{a+r}")
        for r in range(16): E(f"v_fma_f32 v{a+r}, v{a+r}, v{13+2*th}, v{192+r}")
        for r in range(16): E(f"v_max_f32 v{a+r}, 0, v{a+r}")
        for r in range(16): E(f"v_mul_f32 v{a+r}, v{a+r}, v{a+r}")
        for r in range(8): E(f"v_cvt_pk_bf16_f32 v{48+8*th+r}, v{a+2*r}, v{a+2*r+1}")
        E(f"buffer_store_dwordx4 {vr(48+8*th,4)}, v8, s[4:7], s{21+th} offen")
        E(f"buffer_store_dwordx4 {vr(52+8*th,4)}, v8, s[4:7], s{21+th} offen offset:1024")
    LBL("G1_END")
    E("s_endpgm")
    LBL("G1_ST")
    for i in range(8):
        E(f"s_waitcnt vmcnt({7-i})"); E(f"ds_write_b128 v6, {vr(176+4*i,4)} offset:{4096*i}")
    E("v_lshrrev_b32 v10, 2, v2"); E("v_lshlrev_b32 v10, 6, v10"); E("v_and_b32 v11, 3, v2"); E("v_lshl_add_u32 v10, v11, 3, v10")
    for i in range(4): E(f"v_mov_b32 v{12+i}, 0x3f803f80")
    E("s_waitcnt lgkmcnt(0)"); E("s_barrier")
    def rdS(k):
        b = 48+16*(k % 3)
        for tg in range(4):
            for h in range(2):
                E(f"ds_read_b64_tr_b16 {vr(b+4*tg+2*h,2)}, v10 offset:{32768*(tg>>1)+32*(tg&1)+2048*k+1024*h}")
    rdS(0)
    for k in range(16):
        if k+1 < 16: rdS(k+1)
        E(f"s_waitcnt lgkmcnt({8 if k+1 < 16 else 0})")
        for tg in range(4):
            f = vr(48+16*(k % 3)+4*tg, 4)
            E(f"v_mfma_f32_16x16x32_bf16 {vr(16+4*tg,4)}, {f}, {f}, " + ("0" if k == 0 else vr(16+4*tg, 4)))
            E(f"v_mfma_f32_16x16x32_bf16 {vr(32+4*tg,4)}, v[12:15], {f}, " + ("0" if k == 0 else vr(32+4*tg, 4)))
    E("v_and_b32 v11, 3, v2")
    E("v_cmp_eq_u32 s[24:25], 1, v11"); E("v_cmp_eq_u32 s[26:27], 2, v11"); E("v_cmp_eq_u32 s[28:29], 3, v11")
    E("v_bfe_u32 v3, v2, 2, 2"); E("v_lshrrev_b32 v4, 4, v2"); E("v_cmp_eq_u32 vcc, v3, v4")
    E("v_and_b32 v5, 15, v2"); E("v_lshlrev_b32 v5, 3, v5"); E("v_add_u32 v5, 0x10000, v5"); E("s_nop 7")
    for tg in range(4):
        q = 16+4*tg; m = 32+4*tg
        E(f"v_cndmask_b32 v{q}, v{q}, v{q+1}, s[24:25]"); E(f"v_cndmask_b32 v{q}, v{q}, v{q+2}, s[26:27]"); E(f"v_cndmask_b32 v{q}, v{q}, v{q+3}, s[28:29]")
        E(f"v_mul_f32 v{m}, 0x3b000000, v{m}"); E(f"v_mul_f32 v{q}, 0x3b000000, v{q}")
        E(f"v_fma_f32 v{q}, -v{m}, v{m}, v{q}"); E(f"v_max_f32 v{q}, 0, v{q}")
        rnd(q, q); rnd(m, m)
        E(f"v_add_f32 v{q}, 0x3727c5ac, v{q}"); rnd(q, q)
        E(f"v_sqrt_f32 v{q}, v{q}"); E("s_nop 0"); rnd(q, q)
        E(f"v_rcp_f32 v{m+1}, v{q}")
    E("s_and_saveexec_b64 s[30:31], vcc")
    for tg in range(4): E(f"ds_write_b64 v5, {vr(32+4*tg,2)} offset:{128*tg}")
    E("s_mov_b64 exec, s[30:31]")
    E("s_waitcnt lgkmcnt(0)"); E("s_barrier")
    E("s_endpgm")
```

```python
from gen2 import *
def k_gemm2():
    head("gemm2_kernel")
    srd(4, 144, WSB); srd(8, 128, 2048*512*2); srd(12, 104, 1024)
    E("s_cmp_ge_u32 s2, 256"); E("s_cbranch_scc1 G2_END")
    E("s_and_b32 s16, s2, 7"); E("s_lshl_b32 s16, s16, 2"); E("s_bfe_u32 s17, s2, 0x20003"); E("s_add_u32 s16, s16, s17")
    E("s_lshr_b32 s17, s2, 5")
    E("v_lshrrev_b32 v1, 6, v0"); E("v_and_b32 v2, 63, v0"); E("v_lshlrev_b32 v3, 4, v2")
    E("v_readfirstlane_b32 s18, v1")
    KW, DEPTH = 28, 11
    E("s_mul_i32 s19, s18, %d" % KW)
    E("s_mul_i32 s20, s17, 224"); E("s_add_u32 s20, s20, s19"); E("s_lshl_b32 s20, s20, 10"); E(f"s_add_u32 s20, s20, {hex(W2P)}"); E(f"s_add_u32 s21, s20, {112*1024}")
    E("s_mul_i32 s22, s16, 224"); E("s_add_u32 s22, s22, s19"); E("s_lshl_b32 s22, s22, 10"); E(f"s_add_u32 s22, s22, {hex(HP)}"); E(f"s_add_u32 s23, s22, {112*1024}")
    E("s_waitcnt lgkmcnt(0)")
    FB = 72
    def ld(k):
        b = FB + 16*(k % DEPTH)
        for j in range(4): E(f"buffer_load_dwordx4 {vr(b+4*j,4)}, v3, s[4:7], s{20+j} offen offset:{1024*(k&3)}")
        if k & 3 == 3:
            for j in range(4): E(f"s_add_u32 s{20+j}, s{20+j}, 4096")
    for k in range(DEPTH-1): ld(k)
    for k in range(KW):
        if k+DEPTH-1 < KW: ld(k+DEPTH-1)
        E(f"s_waitcnt vmcnt({4*min(DEPTH-1, KW-1-k)})")
        b = FB + 16*(k % DEPTH)
        for dt in range(2):
            for th in range(2):
                a = 8+16*(2*dt+th)
                E(f"v_mfma_f32_32x32x16_bf16 {vr(a,16)}, {vr(b+4*dt,4)}, {vr(b+8+4*th,4)}, " + ("0" if k == 0 else vr(a, 16)))
    E("s_lshr_b32 s24, s18, 1"); E("s_and_b32 s25, s18, 1")
    E("s_lshl_b32 s26, s17, 1"); E("s_add_u32 s26, s26, s24"); E("s_lshl_b32 s26, s26, 5")
    E("s_lshl_b32 s27, s16, 1"); E("s_add_u32 s27, s27, s25"); E("s_lshl_b32 s27, s27, 5")
    E("v_lshrrev_b32 v4, 5, v2"); E("v_and_b32 v5, 31, v2")
    E("v_lshlrev_b32 v6, 14, v4"); E("v_lshl_add_u32 v6, v5, 1, v6")
    E("s_lshl_b32 s28, s26, 12"); E("s_lshl_b32 s29, s27, 1"); E("s_add_u32 s28, s28, s29"); E(f"s_add_u32 s28, s28, {hex(X1T)}")
    for r in range(16):
        E(f"buffer_load_ushort v{FB+r}, v6, s[4:7], s28 offen")
        E(f"s_add_u32 s28, s28, {4096 if (r & 3) != 3 else 5*4096}")
    E("v_lshlrev_b32 v7, 4, v4"); E("s_lshl_b32 s28, s26, 2"); E(f"s_add_u32 s28, s28, {MOD+5*512*4}")
    for a in range(4): E(f"buffer_load_dwordx4 {vr(FB+16+4*a,4)}, v7, s[4:7], s28 offen offset:{32*a}")
    E("v_lshlrev_b32 v7, 3, v4"); E("s_lshl_b32 s28, s26, 1")
    for a in range(4): E(f"buffer_load_dwordx2 {vr(FB+32+2*a,2)}, v7, s[12:15], s28 offen offset:{16*a}")
    E("v_lshl_add_u32 v1, v1, 14, v3")
    for tl in range(4):
        for a in range(4): E(f"ds_write_b128 v1, {vr(8+16*tl+4*a,4)} offset:{4096*tl+1024*a}")
    E("s_lshl_b32 s28, s18, 12"); E("v_add_u32 v1, s28, v3")
    E("s_waitcnt lgkmcnt(0)"); E("s_barrier")
    for w in range(4):
        for a in range(4): E(f"ds_read_b128 {vr(8+16*w+4*a,4)}, v1 offset:{16384*w+1024*a}")
    E("v_lshlrev_b32 v6, 10, v5"); E("v_lshl_add_u32 v6, v4, 3, v6")
    E("s_lshl_b32 s28, s27, 10"); E("s_lshl_b32 s29, s26, 1"); E("s_add_u32 s28, s28, s29")
    E("s_waitcnt vmcnt(0)")
    for r in range(16): lo(FB+r, FB+r)
    for a in range(8): lo(FB+40+2*a, FB+32+a); hi(FB+41+2*a, FB+32+a)
    E("s_waitcnt lgkmcnt(0)")
    for r in range(16):
        E(f"v_add_f32 v{8+r}, v{8+r}, v{24+r}"); E(f"v_add_f32 v{40+r}, v{40+r}, v{56+r}")
    for r in range(16): E(f"v_add_f32 v{8+r}, v{8+r}, v{40+r}")
    def rnd16(b):
        for e in range(0, 16, 2):
            E(f"v_cvt_pk_bf16_f32 v24, v{b+e}, v{b+1+e}"); lo(b+e, 24); hi(b+1+e, 24)
    rnd16(8)
    for r in range(16): E(f"v_add_f32 v{8+r}, v{8+r}, v{FB+40+r}")
    rnd16(8)
    for r in range(16): E(f"v_mul_f32 v{8+r}, v{8+r}, v{FB+16+r}")
    rnd16(8)
    for r in range(16): E(f"v_add_f32 v{8+r}, v{8+r}, v{FB+r}")
    for e in range(8): E(f"v_cvt_pk_bf16_f32 v{24+e}, v{8+2*e}, v{9+2*e}")
    for a in range(4): E(f"buffer_store_dwordx2 {vr(24+2*a,2)}, v6, s[8:11], s28 offen offset:{16*a}")
    LBL("G2_END")
    E("s_endpgm")

KS = [("prep_kernel", 744, 256, 33792, 112, k_prep), ("conv_kernel", 568, 256, 8*CS+4608, 140, k_conv),
      ("gemm1_kernel", 256, 512, 66048, 240, k_gemm1), ("gemm2_kernel", 256, 256, 65536, 248, k_gemm2)]
def build(path):
    ref = open("adaLN_cond__ssm_conv_s4__dense_activation_squared_relu__prompt.s.ref").read().split("\n")
    hdr = [l for l in ref if l.startswith(";") and "@launch" not in l]
    for n, g, b, lds, vg, f in KS: hdr.append(f"; @launch kernel={n} grid=({g},1,1) block=({b},1,1) lds={lds}")
    L.clear()
    for n, g, b, lds, vg, f in KS: f()
    out = hdr + ['.amdgcn_target "amdgcn-amd-amdhsa--gfx950"', ".text"] + L + ['.section .rodata,"a"']
    for n, g, b, lds, vg, f in KS:
        out += [".p2align 6", f".amdhsa_kernel {n}", f"  .amdhsa_next_free_vgpr {vg}", "  .amdhsa_next_free_sgpr 64",
                f"  .amdhsa_accum_offset {vg}", "  .amdhsa_group_segment_fixed_size 0", "  .amdhsa_kernarg_size 152",
                "  .amdhsa_user_sgpr_count 2", "  .amdhsa_user_sgpr_kernarg_segment_ptr 1", "  .amdhsa_system_sgpr_workgroup_id_x 1", ".end_amdhsa_kernel"]
    open(path, "w").write("\n".join(out) + "\n")
if __name__ == "__main__":
    import sys
    build(sys.argv[1] if len(sys.argv) > 1 else "adaLN_cond__ssm_conv_s4__dense_activation_squared_relu__prompt.s")
```

```python
L = []
def E(s): L.append("    " + s)
def LBL(s): L.append(s + ":")
def C(s): L.append("    ; " + s)
MOD, S1, S2, XT, KG, X1T, W1P, W2P, HP = 0x0, 0x4000, 0x6000, 0x10000, 0x500000, 0xA00000, 0xC00000, 0xE00000, 0x1000000
WSB = 0x2000000
FLG = 0x8000
KPAR, KCH = 4160, 8320
def vr(a, n): return f"v[{a}:{a+n-1}]"
def srd(d, karg_off, nbytes):
    E(f"s_load_dwordx2 s[{d}:{d+1}], s[0:1], {karg_off}")
    E(f"s_mov_b32 s{d+2}, {hex(nbytes)}")
    E(f"s_mov_b32 s{d+3}, 0x00020000")
def head(name):
    L.append(f".globl {name}\n.p2align 8\n.type {name},@function\n{name}:")
import os
DBG = int(os.environ.get("DBG", "0"))
KIDX = [0]; TSV = [252]
def TS(slot):
    if not DBG: return
    E("s_memrealtime s[60:61]")
    a = TSV[0]; E(f"v_lshrrev_b32 v{a}, 6, v0"); E(f"v_lshlrev_b32 v{a}, 5, v{a}")
    E("s_lshl_b32 s62, s2, 8"); E(f"s_add_u32 s62, s62, {hex(0x1800000 + KIDX[0]*0x40000 + slot*4)}")
    E("s_waitcnt lgkmcnt(0)"); E(f"v_mov_b32 v{a+1}, s60")
    E(f"buffer_store_dword v{a+1}, v{a}, s[4:7], s62 offen")
def lo(d, s): E(f"v_lshlrev_b32 v{d}, 16, v{s}")
def hi(d, s): E(f"v_and_b32 v{d}, 0xffff0000, v{s}")
def rnd(d, s):
    E(f"v_cvt_pk_bf16_f32 v{d}, v{s}, v{s}"); hi(d, d)
def wavesum(regs):
    steps = ["row_shr:1 row_mask:0xf bank_mask:0xf bound_ctrl:0", "row_shr:2 row_mask:0xf bank_mask:0xf bound_ctrl:0",
             "row_shr:4 row_mask:0xf bank_mask:0xf bound_ctrl:0", "row_shr:8 row_mask:0xf bank_mask:0xf bound_ctrl:0",
             "row_bcast:15 row_mask:0xa bank_mask:0xf", "row_bcast:31 row_mask:0xc bank_mask:0xf"]
    E("s_nop 1")
    for st in steps:
        for r in regs: E(f"v_add_f32_dpp v{r}, v{r}, v{r} {st}")
        if len(regs) < 3: E("s_nop 1")
    E("s_nop 1")

def k_prep():
    head("prep_kernel")
    srd(4, 144, WSB)
    TS(0)
    E("s_cmp_lt_u32 s2, 48"); E("s_cbranch_scc1 P_MOD")
    E("s_cmp_lt_u32 s2, 176"); E("s_cbranch_scc1 P_LN")
    E("s_cmp_lt_u32 s2, 232"); E("s_cbranch_scc1 P_W2")
    E("s_cmp_lt_u32 s2, 744"); E("s_cbranch_scc1 P_KG")
    E("s_endpgm")
    LBL("P_MOD")
    srd(8, 120, 512*3072*2); srd(12, 112, 1024)
    E("v_and_b32 v1, 7, v0"); E("v_lshrrev_b32 v2, 3, v0")
    E("s_mov_b32 s16, 98304")
    E("v_mul_lo_u32 v3, v2, s16"); E("v_lshl_add_u32 v3, v1, 4, v3")
    E("s_lshl_b32 s17, s2, 7")
    E("v_lshlrev_b32 v4, 5, v2")
    E("s_waitcnt lgkmcnt(0)")
    E("v_lshlrev_b32 v5, 7, v0"); E("v_mov_b32 v6, 0"); E(f"s_mov_b32 s18, {hex(FLG)}")
    E("buffer_store_dword v6, v5, s[4:7], s18 offen")
    E("buffer_load_dwordx4 v[8:11], v4, s[12:15], 0 offen")
    E("buffer_load_dwordx4 v[12:15], v4, s[12:15], 0 offen offset:16")
    for i in range(16):
        E(f"buffer_load_dwordx4 {vr(48+4*i,4)}, v3, s[8:11], s17 offen")
        E("s_add_u32 s17, s17, 6144")
    E("s_waitcnt vmcnt(16)")
    for i in range(8): lo(16+2*i, 8+i); hi(17+2*i, 8+i)
    for i in range(16): E(f"v_mul_f32 v{32+i}, 0xbfb8aa3b, v{16+i}")
    for i in range(16): E(f"v_exp_f32 v{32+i}, v{32+i}")
    for i in range(16): E(f"v_add_f32 v{32+i}, 1.0, v{32+i}")
    for i in range(16): E(f"v_rcp_f32 v{32+i}, v{32+i}")
    for i in range(16): E(f"v_mul_f32 v{16+i}, v{16+i}, v{32+i}")
    for i in range(16): rnd(16+i, 16+i)
    for j in range(8): E(f"v_mov_b32 v{32+j}, 0")
    for i in range(16):
        E(f"s_waitcnt vmcnt({15-i})")
        for j in range(4): lo(40+2*j, 48+4*i+j); hi(41+2*j, 48+4*i+j)
        for j in range(8): E(f"v_fmac_f32 v{32+j}, v{40+j}, v{16+i}")
    E("v_lshlrev_b32 v5, 5, v0")
    E("ds_write_b128 v5, v[32:35]"); E("ds_write_b128 v5, v[36:39] offset:16")
    E("s_waitcnt lgkmcnt(0)"); E("s_barrier")
    E("v_and_b32 v6, 63, v0"); E("v_lshlrev_b32 v6, 2, v6")
    for i in range(32): E(f"ds_read_b32 v{48+i}, v6 offset:{256*i}")
    E("s_waitcnt lgkmcnt(0)")
    for st in (16, 8, 4, 2, 1):
        for i in range(st): E(f"v_add_f32 v{48+i}, v{48+i}, v{48+i+st}")
    rnd(48, 48)
    E("s_lshl_b32 s17, s2, 8")
    E(f"buffer_store_dword v48, v6, s[4:7], s17 offen")
    TS(7); E("s_endpgm")
    LBL("P_LN")
    srd(8, 0, 2048*512*2)
    E("s_sub_u32 s16, s2, 48")
    E("v_lshrrev_b32 v1, 6, v0"); E("v_and_b32 v2, 63, v0")
    E("v_lshlrev_b32 v3, 12, v1"); E("v_lshl_add_u32 v3, v2, 4, v3")
    E("s_lshl_b32 s17, s16, 14")
    E("s_waitcnt lgkmcnt(0)")
    for r in range(4): E(f"buffer_load_dwordx4 {vr(8+4*r,4)}, v3, s[8:11], s17 offen offset:{1024*r}")
    for r in range(4):
        E(f"s_waitcnt vmcnt({3-r})")
        for j in range(4): lo(32+8*r+2*j, 8+4*r+j); hi(33+8*r+2*j, 8+4*r+j)
        E(f"v_add_f32 v{24+r}, v{32+8*r}, v{33+8*r}")
        for j in range(2, 8): E(f"v_add_f32 v{24+r}, v{24+r}, v{32+8*r+j}")
    wavesum([24, 25, 26, 27])
    for r in range(4): E(f"v_readlane_b32 s{20+r}, v{24+r}, 63")
    E("s_nop 1")
    for r in range(4): E(f"v_mov_b32 v{24+r}, s{20+r}")
    for r in range(4): E(f"v_mul_f32 v{24+r}, 0x3b000000, v{24+r}")
    for r in range(4):
        E(f"v_mov_b32 v{28+r}, 0")
        for j in range(8):
            E(f"v_sub_f32 v64, v{32+8*r+j}, v{24+r}"); E(f"v_fmac_f32 v{28+r}, v64, v64")
    wavesum([28, 29, 30, 31])
    for r in range(4): E(f"v_readlane_b32 s{20+r}, v{28+r}, 63")
    E("s_nop 1")
    for r in range(4): E(f"v_mov_b32 v{28+r}, s{20+r}")
    for r in range(4): E(f"v_mul_f32 v{28+r}, 0x3b000000, v{28+r}")
    for r in range(4): rnd(28+r, 28+r); rnd(24+r, 24+r)
    for r in range(4): E(f"v_add_f32 v{28+r}, 0x3727c5ac, v{28+r}")
    for r in range(4): rnd(28+r, 28+r)
    for r in range(4): E(f"v_sqrt_f32 v{28+r}, v{28+r}")
    for r in range(4): rnd(28+r, 28+r)
    for r in range(4): E(f"v_rcp_f32 v{28+r}, v{28+r}")
    E("s_nop 0")
    for r in range(4):
        for j in range(0, 8, 2):
            a = 32+8*r+j
            E(f"v_sub_f32 v64, v{a}, v{24+r}"); E(f"v_sub_f32 v65, v{a+1}, v{24+r}")
            E("v_cvt_pk_bf16_f32 v66, v64, v65"); lo(64, 66); hi(65, 66)
            E(f"v_mul_f32 v64, v64, v{28+r}"); E(f"v_mul_f32 v65, v65, v{28+r}")
            E(f"v_cvt_pk_bf16_f32 v{72+4*j+r}, v64, v{a}")
            E(f"v_cvt_pk_bf16_f32 v{72+4*(j+1)+r}, v65, v{a+1}")
    E("v_mul_u32_u24 v4, 528, v2"); E("v_lshl_add_u32 v4, v1, 4, v4")
    for j in range(8): E(f"ds_write_b128 v4, {vr(72+4*j,4)} offset:{64*j}")
    E("s_waitcnt lgkmcnt(0)"); E("s_barrier")
    E("v_and_b32 v5, 3, v0"); E("v_lshrrev_b32 v6, 2, v0")
    E("v_lshrrev_b32 v7, 3, v6"); E("v_mul_u32_u24 v7, 528, v7")
    E("v_and_b32 v4, 7, v6"); E("v_lshl_add_u32 v7, v4, 6, v7"); E("v_lshl_add_u32 v7, v5, 4, v7")
    for i in range(8): E(f"ds_read_b128 {vr(72+4*i,4)}, v7 offset:{528*8*i}")
    E("v_lshlrev_b32 v6, 13, v6"); E("v_lshl_add_u32 v6, v5, 4, v6")
    E("s_lshl_b32 s17, s16, 6"); E(f"s_add_u32 s17, s17, {hex(XT)}")
    for i in range(8):
        E(f"s_waitcnt lgkmcnt({7-i})")
        E(f"buffer_store_dwordx4 {vr(72+4*i,4)}, v6, s[4:7], s17 offen")
        E("s_add_u32 s17, s17, 0x80000")
    TS(7); E("s_endpgm")
    LBL("P_W2")
    srd(8, 96, 1792*512*2)
    E("s_sub_u32 s16, s2, 176")
    E("v_lshrrev_b32 v1, 6, v0"); E("v_and_b32 v2, 63, v0")
    E("v_lshrrev_b32 v3, 1, v1"); E("v_and_b32 v4, 1, v1")
    E("v_lshlrev_b32 v5, 14, v3"); E("v_lshl_add_u32 v5, v4, 12, v5"); E("v_lshl_add_u32 v5, v2, 4, v5")
    E("s_lshl_b32 s17, s16, 15"); E("s_add_u32 s18, s17, 8192")
    E("s_mov_b32 s20, 0x05040100"); E("s_mov_b32 s21, 0x07060302")
    E("s_waitcnt lgkmcnt(0)")
    for e in range(8): E(f"buffer_load_dwordx4 {vr(8+4*e,4)}, v5, s[8:11], s{17+(e>>2)} offen offset:{1024*(e&3)}")
    E("v_lshrrev_b32 v6, 2, v2"); E("v_mul_u32_u24 v6, 112, v6"); E("v_add_u32 v6, v6, v3")
    E("v_lshlrev_b32 v6, 10, v6"); E("v_and_b32 v7, 3, v2"); E("v_lshl_add_u32 v6, v7, 7, v6"); E("v_lshl_add_u32 v6, v4, 9, v6")
    E("s_lshl_b32 s17, s16, 11"); E(f"s_add_u32 s17, s17, {hex(W2P)}")
    E("s_waitcnt vmcnt(0)")
    for dd in range(8):
        for ep in range(4):
            E(f"v_perm_b32 v{40+4*dd+ep}, v{8+4*(2*ep+1)+(dd>>1)}, v{8+4*(2*ep)+(dd>>1)}, s{20+(dd&1)}")
        E(f"buffer_store_dwordx4 {vr(40+4*dd,4)}, v6, s[4:7], s17 offen offset:{16*dd}")
    TS(7); E("s_endpgm")
    LBL("P_KG")
    TB = 9792; PAR = 4*TB
    for i in range(6): srd(8+4*i, 8+8*i, 512*128*2)
    srd(32, 56, 1024)
    E("s_sub_u32 s16, s2, 232") if False else None
    E("s_sub_u32 s36, s2, 232")
    E("v_and_b32 v1, 127, v0"); E("v_lshlrev_b32 v2, 1, v1")
    E("s_lshl_b32 s37, s36, 8"); E("s_lshl_b32 s38, s36, 1")
    E("v_mov_b32 v3, 0")
    E("s_waitcnt lgkmcnt(0)")
    for i in range(6): E(f"buffer_load_ushort v{8+i}, v2, s[{8+4*i}:{11+4*i}], s37 offen")
    E("buffer_load_ushort v14, v3, s[32:35], s38 offen")
    E("v_and_b32 v5, 63, v0"); E("v_lshrrev_b32 v6, 6, v0")
    E("v_and_b32 v20, 3, v5"); E("v_bfe_u32 v21, v5, 2, 2")
    E("v_and_b32 v22, 15, v5"); E("v_lshrrev_b32 v23, 4, v5")
    E("v_lshlrev_b32 v24, 7, v22"); E("v_cvt_f32_u32 v24, v24")
    E("s_mov_b32 s40, 0x06020404"); E("v_lshlrev_b32 v25, 3, v20"); E("v_lshrrev_b32 v25, v25, s40"); E("v_and_b32 v25, 7, v25")
    E("v_cmp_eq_u32 vcc, 1, v20"); E("v_mov_b32 v26, 0"); E("v_mov_b32 v27, 512"); E("v_cndmask_b32 v26, v26, v27, vcc")
    E("v_add_u32 v25, v25, v26"); E("v_lshl_add_u32 v25, v21, 7, v25"); E("v_cvt_f32_u32 v25, v25")
    E("v_lshlrev_b32 v26, 7, v21"); E("v_add_u32 v27, 2045, v21"); E("v_cmp_lt_u32 vcc, 1, v21"); E("s_nop 1"); E("v_cndmask_b32 v26, v26, v27, vcc")
    E("v_lshl_add_u32 v26, v20, 1, v26"); E("v_add_u32 v26, 1, v26"); E("v_cvt_f32_u32 v26, v26")
    E("v_lshlrev_b32 v27, 3, v22"); E("v_cvt_f32_u32 v27, v27")
    E("s_waitcnt vmcnt(0)")
    for i in range(7): lo(8+i, 8+i)
    E("v_mul_f32 v14, 0x3fb8aa3b, v14"); E("v_exp_f32 v14, v14"); E("s_nop 0"); rnd(14, 14)
    E("v_mul_f32 v16, v14, v8"); E("v_mul_f32 v16, 0x3fb8aa3b, v16")
    E("v_mul_f32 v17, v14, v9"); E("v_mul_f32 v17, 0.15915494, v17")
    E("v_mul_f32 v10, v14, v10"); E("v_mul_f32 v11, v14, v11")
    E("v_mul_f32 v18, v12, v10"); E("v_fma_f32 v18, -v13, v11, v18")
    E("v_mul_f32 v19, v12, v11"); E("v_fmac_f32 v19, v13, v10")
    E("v_lshlrev_b32 v4, 4, v1")
    E(f"ds_write_b128 v4, v[16:19] offset:{PAR}")
    TS(1)
    E("s_waitcnt lgkmcnt(0)"); E("s_barrier")
    E("v_lshlrev_b32 v4, 9, v6"); E("v_lshl_add_u32 v4, v23, 6, v4")
    for s in range(2):
        for q in range(4): E(f"ds_read_b128 {vr(32+16*s+4*q,4)}, v4 offset:{PAR+256*s+16*q}")
    for s in range(2):
        E(f"s_waitcnt lgkmcnt({4*(1-s)})")
        for q in range(4):
            p = 32+16*s+4*q
            for t in range(4):
                E(f"v_mul_f32 v{64+t}, v{p}, v{24+t}"); E(f"v_mul_f32 v{68+t}, v{p+1}, v{24+t}")
            for t in range(4): E(f"v_fract_f32 v{68+t}, v{68+t}")
            for t in range(4): E(f"v_exp_f32 v{64+t}, v{64+t}")
            for t in range(4): E(f"v_cos_f32 v{72+t}, v{68+t}")
            for t in range(4): E(f"v_sin_f32 v{68+t}, v{68+t}")
            for t in range(4): E(f"v_mul_f32 v{72+t}, v{72+t}, v{64+t}")
            for t in range(4): E(f"v_mul_f32 v{68+t}, v{68+t}, v{64+t}")
            for t in range(3): E(f"v_cvt_pk_bf16_f32 v{80+4*t+q}, v{72+t}, v{68+t}")
            E(f"v_mul_f32 v64, v{p+2}, v75"); E(f"v_fma_f32 v64, -v{p+3}, v71, v64")
            E(f"v_mul_f32 v65, v{p+2}, v71"); E(f"v_fmac_f32 v65, v{p+3}, v75")
            E(f"v_cvt_pk_bf16_f32 v{92+q}, v64, -v65")
        E("s_nop 1")
        for t in range(3):
            E(f"v_mfma_f32_16x16x32_bf16 {vr(96+4*t,4)}, {vr(80+4*t,4)}, v[92:95], " + ("0" if s == 0 else vr(96+4*t,4)))
    TS(2)
    E("v_mul_u32_u24 v28, 36, v22"); E(f"v_mul_u32_u24 v29, {TB}, v6"); E("v_add_u32 v28, v28, v29")
    E("v_mul_u32_u24 v29, 2304, v23"); E("v_add_u32 v29, v29, v28")
    E("v_mul_u32_u24 v30, 576, v23"); E("v_add_u32 v30, v30, v28")
    E("v_lshlrev_b32 v31, 2, v23"); E("v_add_u32 v31, 9204, v31"); E("v_add_u32 v31, v31, v28")
    E("v_cmp_lt_u32 vcc, 1, v23"); E("s_nop 1"); E("v_cndmask_b32 v31, v30, v31, vcc")
    E("s_nop 4")
    for r in range(4): E(f"ds_write_b32 v29, v{96+r} offset:{576*r}")
    for r in range(4): E(f"ds_write_b32 v30, v{100+r} offset:{4*[4,580,2,6][r]}")
    for r in range(4): E(f"ds_write_b32 v31, v{104+r} offset:{4*(1+2*r)}")
    E("v_lshlrev_b32 v7, 3, v0"); E("v_sub_u32 v7, 2047, v7")
    for e in range(9):
        E(f"v_subrev_u32 v{32+e}, {e}, v7"); E(f"v_max_i32 v{32+e}, 0, v{32+e}"); E(f"v_cvt_f32_u32 v{32+e}, v{32+e}")
    for e in range(9): rnd(32+e, 32+e)
    for e in range(9):
        E(f"v_cvt_u32_f32 v{32+e}, v{32+e}"); E(f"v_lshrrev_b32 v44, 3, v{32+e}"); E(f"v_add_lshl_u32 v{32+e}, v{32+e}, v44, 2")
    E("s_waitcnt lgkmcnt(0)"); E("s_barrier")
    TS(3)
    for w in range(4):
        for e in range(9): E(f"ds_read_b32 v{48+12*w+e}, v{32+e} offset:{TB*w}")
    E("v_cmp_gt_u32 vcc, 255, v0")
    E("s_mul_i32 s37, s36, %d" % KCH); E(f"s_add_u32 s37, s37, {hex(KG)}")
    E("v_lshlrev_b32 v4, 4, v0")
    E("v_and_b32 v5, 1, v0"); E("v_mul_u32_u24 v5, %d, v5" % KPAR)
    for i in range(4): E(f"v_mov_b32 v{16+i}, 0")
    E("s_waitcnt lgkmcnt(0)")
    for e in range(9):
        E(f"v_add_f32 v{48+e}, v{48+e}, v{60+e}"); E(f"v_add_f32 v{72+e}, v{72+e}, v{84+e}")
    for e in range(9): E(f"v_add_f32 v{48+e}, v{48+e}, v{72+e}")
    E("v_cndmask_b32 v56, 0, v56, vcc")
    for i in range(4):
        E(f"v_cvt_pk_bf16_f32 v{60+i}, v{48+2*i}, v{49+2*i}"); E(f"v_cvt_pk_bf16_f32 v{64+i}, v{49+2*i}, v{50+2*i}")
    E("buffer_store_dwordx4 v[60:63], v4, s[4:7], s37 offen")
    E("s_add_u32 s38, s37, %d" % KPAR)
    E("buffer_store_dwordx4 v[64:67], v4, s[4:7], s38 offen")
    E("s_add_u32 s38, s37, 4096")
    E("buffer_store_dwordx4 v[16:19], v5, s[4:7], s38 offen")
    TS(7); E("s_endpgm")
```

```python
from gen1 import *
CS = 4160
def k_conv():
    head("conv_kernel")
    srd(4, 144, WSB); TS(0)
    E("s_cmp_lt_u32 s2, 56"); E("s_cbranch_scc1 C_W1")
    E("s_cmp_lt_u32 s2, 568"); E("s_cbranch_scc1 C_CV")
    E("s_endpgm")
    LBL("C_W1")
    srd(8, 80, 512*1792*2); srd(12, 88, 1792*2)
    E("v_and_b32 v1, 3, v0"); E("v_lshrrev_b32 v2, 2, v0")
    E("v_mul_u32_u24 v3, 28672, v2"); E("v_lshl_add_u32 v3, v1, 4, v3")
    E("s_lshl_b32 s17, s2, 6")
    E("v_lshlrev_b32 v4, 5, v2")
    E("s_waitcnt lgkmcnt(0)")
    E(f"s_mov_b32 s18, {MOD+4*512*4}"); E(f"s_mov_b32 s19, {MOD+3*512*4}")
    E("buffer_load_dwordx4 v[8:11], v4, s[4:7], s18 offen"); E("buffer_load_dwordx4 v[12:15], v4, s[4:7], s18 offen offset:16")
    E("buffer_load_dwordx4 v[16:19], v4, s[4:7], s19 offen"); E("buffer_load_dwordx4 v[20:23], v4, s[4:7], s19 offen offset:16")
    for e in range(8):
        E(f"buffer_load_dwordx4 {vr(24+4*e,4)}, v3, s[8:11], s17 offen"); E("s_add_u32 s17, s17, 3584")
    E("v_and_b32 v5, 31, v0"); E("v_lshlrev_b32 v5, 1, v5"); E("s_lshl_b32 s17, s2, 6")
    E("buffer_load_ushort v7, v5, s[12:15], s17 offen")
    E("v_lshlrev_b32 v6, 9, v2"); E("v_lshl_add_u32 v6, v1, 7, v6")
    E("s_lshl_b32 s17, s2, 15"); E(f"s_add_u32 s17, s17, {hex(W1P)}")
    E("s_mov_b32 s20, 0x3f803f80")
    E("s_waitcnt vmcnt(9)")
    for e in range(8): E(f"v_add_f32 v{8+e}, 1.0, v{8+e}")
    for e in range(8): rnd(8+e, 8+e)
    for i in range(16): E(f"v_mov_b32 v{96+i}, 0")
    E("s_waitcnt vmcnt(1)")
    for ff in range(8):
        for e in range(8): (hi if ff & 1 else lo)(56+e, 24+4*e+(ff >> 1))
        for e in range(8): E(f"v_fmac_f32 v{104+ff}, v{56+e}, v{16+e}")
        for e in range(8): E(f"v_mul_f32 v{56+e}, v{56+e}, v{8+e}")
        for ep in range(4): E(f"v_cvt_pk_bf16_f32 v{64+4*ff+ep}, v{56+2*ep}, v{57+2*ep}")
        E(f"buffer_store_dwordx4 {vr(64+4*ff,4)}, v6, s[4:7], s17 offen offset:{16*ff}")
        for ep in range(4): E(f"v_dot2_f32_bf16 v{96+ff}, v{64+4*ff+ep}, s20, v{96+ff}")
    E("s_nop 3")
    E("v_lshlrev_b32 v4, 5, v0")
    E("ds_write_b128 v4, v[96:99]"); E("ds_write_b128 v4, v[100:103] offset:16")
    E("ds_write_b128 v4, v[104:107] offset:8192"); E("ds_write_b128 v4, v[108:111] offset:8208")
    E("s_waitcnt lgkmcnt(0)"); E("s_barrier")
    E("v_bfe_u32 v1, v0, 5, 1"); E("v_lshlrev_b32 v5, 1, v5"); E("v_lshl_add_u32 v5, v1, 13, v5")
    for i in range(64): E(f"ds_read_b32 v{8+i}, v5 offset:{128*i}")
    E("s_waitcnt lgkmcnt(0) vmcnt(8)")
    for st in (32, 16, 8, 4, 2, 1):
        for i in range(st): E(f"v_add_f32 v{8+i}, v{8+i}, v{8+i+st}")
    lo(7, 7); E("v_cvt_f32_u32 v1, v1"); E("v_fmac_f32 v8, v7, v1")
    E("s_lshl_b32 s17, s2, 7"); E(f"s_add_u32 s17, s17, {hex(S1)}")
    E("buffer_store_dword v8, v5, s[4:7], s17 offen")
    TS(7); E("s_endpgm")
    LBL("C_CV")
    U = 8*CS
    E("s_load_dwordx2 s[8:9], s[0:1], 64")
    E("s_sub_u32 s16, s2, 56")
    E("s_lshl_b32 s17, s16, 2"); E("s_and_b32 s18, s16, 0x1fe"); E("s_lshl_b32 s18, s18, 1")
    E("v_lshlrev_b32 v1, 5, v0"); E("v_lshlrev_b32 v2, 4, v0")
    E("s_lshl_b32 s19, s16, 13"); E(f"s_add_u32 s19, s19, {hex(XT)}")
    E("s_mul_i32 s20, s16, %d" % KCH); E(f"s_add_u32 s20, s20, {hex(KG)}"); E("s_add_u32 s21, s20, %d" % KPAR)
    E("s_add_u32 s22, s17, 2048"); E("s_add_u32 s23, s17, 4096")
    E("s_waitcnt lgkmcnt(0)")
    E("s_load_dword s24, s[4:5], s17"); E("s_load_dword s25, s[4:5], s22"); E("s_load_dword s26, s[4:5], s23")
    E("s_load_dword s27, s[8:9], s18")
    E("buffer_load_dwordx4 v[8:11], v1, s[4:7], s19 offen"); E("buffer_load_dwordx4 v[12:15], v1, s[4:7], s19 offen offset:16")
    for c in range(8):
        E(f"buffer_load_dwordx4 {vr(32+4*c,4)}, v2, s[4:7], s{20 if c&1 else 21} offen offset:{2*((7-c) if c&1 else (6-c))}")
    for i in range(4): E(f"v_mov_b32 v{4+i}, 0")
    E("v_min_u32 v3, 29, v0"); E("v_lshlrev_b32 v3, 4, v3")
    E(f"ds_write_b128 v3, v[4:7] offset:{U}")
    E("v_and_b32 v3, 7, v0"); E(f"v_mul_u32_u24 v3, {CS}, v3")
    E("ds_write_b128 v3, v[4:7] offset:4096")
    E("v_and_b32 v64, 63, v0"); E("v_lshrrev_b32 v65, 6, v0")
    E("v_lshrrev_b32 v66, 4, v64"); E("v_bfe_u32 v67, v64, 3, 1")
    E("v_sub_u32 v68, v66, v67"); E("v_lshlrev_b32 v68, 4, v68"); E("v_add_u32 v68, v68, v3")
    E("v_lshlrev_b32 v69, 7, v65"); E("v_sub_u32 v68, v68, v69"); E(f"v_add_u32 v68, {4048-3584-64}, v68")
    E("v_and_b32 v70, 15, v64"); E("v_lshlrev_b32 v71, 5, v70"); E("v_lshl_add_u32 v71, v66, 4, v71")
    E("v_sub_u32 v69, v71, v69"); E(f"v_add_u32 v69, {U+448-64}, v69")
    E("v_lshlrev_b32 v71, 1, v71"); E("v_lshlrev_b32 v70, 4, v66"); E("v_sub_u32 v71, v71, v70"); E("v_lshl_add_u32 v71, v65, 13, v71")
    E("s_waitcnt lgkmcnt(0)")
    E("v_mov_b32 v72, s25"); E("v_add_f32 v72, 1.0, v72"); rnd(72, 72)
    E("s_and_b32 s28, s16, 1"); E("s_lshl_b32 s28, s28, 4"); E("s_lshr_b32 s27, s27, s28"); E("s_lshl_b32 s27, s27, 16")
    E("s_waitcnt vmcnt(8)")
    for e in range(8): lo(16+e, 8+e)
    for e in range(8): E(f"v_mul_f32 v{16+e}, v{16+e}, v72")
    for e in range(0, 8, 2):
        E(f"v_cvt_pk_bf16_f32 v24, v{16+e}, v{17+e}"); lo(16+e, 24); hi(17+e, 24)
    for e in range(8): E(f"v_add_f32 v{16+e}, s24, v{16+e}")
    for e in range(0, 8, 2): E(f"v_cvt_pk_bf16_f32 v{24+e//2}, v{16+e}, v{17+e}")
    E(f"ds_write_b128 v2, v[24:27] offset:{U+480}")
    for c in range(8):
        E(f"s_waitcnt vmcnt({7-c})"); E(f"ds_write_b128 v2, {vr(32+4*c,4)} offset:{CS*c}")
    E("s_waitcnt lgkmcnt(0)"); E("s_barrier")
    TS(1)
    T0, B0, AC = 76, 108, 32
    for s in range(2):
        o = 64*(1-s)
        for q in range(8):
            E(f"ds_read_b128 {vr(T0+4*q,4)}, v68 offset:{o+(7-q)*512}")
            E(f"ds_read_b128 {vr(B0+4*q,4)}, v69 offset:{o+512*q}")
        done = set()
        for n in range(8):
            E(f"s_waitcnt lgkmcnt({2*(7-n)})")
            for q in range(n+1):
                for i in range(n+1):
                    if (q == n or i == n) and q+i <= 7:
                        J = q+i
                        c = "0" if (s == 0 and J not in done) else vr(AC+4*J, 4)
                        done.add(J)
                        E(f"v_mfma_f32_16x16x32_bf16 {vr(AC+4*J,4)}, {vr(T0+4*q,4)}, {vr(B0+4*i,4)}, {c}")
    TS(2); E("s_barrier"); E("s_nop 7")
    for J in range(8): E(f"ds_write_b128 v71, {vr(AC+4*J,4)} offset:{1024*J}")
    E("s_waitcnt lgkmcnt(0)"); E("s_barrier")
    for w in range(4):
        E(f"ds_read_b128 {vr(32+8*w,4)}, v1 offset:{8192*w}"); E(f"ds_read_b128 {vr(36+8*w,4)}, v1 offset:{8192*w+16}")
    for e in range(0, 8, 2): lo(16+e, 24+e//2); hi(17+e, 24+e//2)
    for e in range(8): E(f"v_mul_f32 v{16+e}, s27, v{16+e}")
    def rnd8(b):
        for e in range(0, 8, 2):
            E(f"v_cvt_pk_bf16_f32 v28, v{b+e}, v{b+1+e}"); lo(b+e, 28); hi(b+1+e, 28)
    rnd8(16)
    for e in range(8): hi(8+e, 8+e)
    E("s_waitcnt lgkmcnt(0)")
    for e in range(8):
        E(f"v_add_f32 v{32+e}, v{32+e}, v{40+e}"); E(f"v_add_f32 v{48+e}, v{48+e}, v{56+e}")
    for e in range(8): E(f"v_add_f32 v{32+e}, v{32+e}, v{48+e}")
    rnd8(32)
    for e in range(8): E(f"v_add_f32 v{32+e}, v{32+e}, v{16+e}")
    rnd8(32)
    for e in range(8): E(f"v_mul_f32 v{32+e}, s26, v{32+e}")
    rnd8(32)
    for e in range(8): E(f"v_add_f32 v{32+e}, v{32+e}, v{8+e}")
    for e in range(0, 8, 2): E(f"v_cvt_pk_bf16_f32 v{24+e//2}, v{32+e}, v{33+e}")
    E("s_lshl_b32 s19, s16, 12"); E(f"s_add_u32 s19, s19, {hex(X1T)}")
    E("buffer_store_dwordx4 v[24:27], v2, s[4:7], s19 offen")
    TS(7); E("s_endpgm")
```

```python
from gen2 import *
def k_ffn():
    head("ffn_kernel")
    srd(4, 144, WSB); srd(8, 128, 2048*512*2); srd(12, 104, 1024)
    E("s_cmp_ge_u32 s2, 256"); E("s_cbranch_scc1 F_END")
    E("s_and_b32 s16, s2, 7"); E("s_lshl_b32 s16, s16, 2"); E("s_bfe_u32 s17, s2, 0x20003"); E("s_add_u32 s16, s16, s17")
    E("s_lshr_b32 s17, s2, 5")
    E("v_lshrrev_b32 v1, 6, v0"); E("v_and_b32 v2, 63, v0"); E("v_lshlrev_b32 v8, 4, v2")
    E("v_readfirstlane_b32 s18, v1")
    E("v_and_b32 v3, 7, v0"); E("v_lshrrev_b32 v4, 3, v0")
    E("v_lshlrev_b32 v5, 12, v4"); E("v_lshl_add_u32 v5, v3, 4, v5")
    E("s_lshl_b32 s19, s16, 7"); E(f"s_add_u32 s19, s19, {hex(X1T)}")
    E("s_mul_i32 s32, s18, 14"); E("s_mul_i32 s33, s17, 224"); E("s_add_u32 s33, s33, s32"); E("s_lshl_b32 s33, s33, 10")
    E(f"s_add_u32 s34, s33, {hex(W2P)}"); E(f"s_add_u32 s35, s34, {112*1024}")
    E("s_mul_i32 s33, s16, 224"); E("s_add_u32 s33, s33, s32"); E("s_lshl_b32 s33, s33, 10")
    E(f"s_add_u32 s36, s33, {hex(HP)}"); E(f"s_add_u32 s37, s36, {112*1024}")
    E("s_waitcnt lgkmcnt(0)"); TS(0)
    for i in range(8):
        E(f"buffer_load_dwordx4 {vr(176+4*i,4)}, v5, s[4:7], s19 offen"); E("s_add_u32 s19, s19, 0x40000")
    E("v_lshlrev_b32 v6, 6, v4"); E("v_and_b32 v7, 3, v3"); E("v_lshl_add_u32 v6, v7, 4, v6")
    E("v_lshrrev_b32 v7, 2, v3"); E("v_lshl_add_u32 v6, v7, 15, v6")
    E("s_mul_i32 s20, s17, 7"); E("s_add_u32 s20, s20, s18")
    def w2ld(k):
        ks, dt = k >> 1, k & 1
        E(f"buffer_load_dwordx4 {vr(48+4*k,4)}, v8, s[4:7], s{34+dt} offen offset:{1024*(ks&3)}")
        if dt == 1 and ks & 3 == 3: E("s_add_u32 s34, s34, 4096"); E("s_add_u32 s35, s35, 4096")
    E("s_cmp_eq_u32 s18, 7"); E("s_cbranch_scc1 F_ST")
    E("s_lshl_b32 s21, s20, 15"); E(f"s_add_u32 s21, s21, {hex(W1P)}")
    for k in range(32):
        E(f"buffer_load_dwordx4 {vr(48+4*k,4)}, v8, s[4:7], s21 offen offset:{1024*(k&3)}")
        if k & 3 == 3: E("s_add_u32 s21, s21, 4096")
    for i in range(8):
        E(f"s_waitcnt vmcnt({39-i})"); E(f"ds_write_b128 v6, {vr(176+4*i,4)} offset:{4096*i}")
    E("v_lshrrev_b32 v9, 5, v2"); E("v_lshlrev_b32 v9, 4, v9")
    E("s_lshl_b32 s21, s20, 7"); E(f"s_add_u32 s22, s21, {hex(S2)}"); E(f"s_add_u32 s21, s21, {hex(S1)}")
    E("s_waitcnt lgkmcnt(0)")
    for a in range(4):
        E(f"buffer_load_dwordx4 {vr(176+4*a,4)}, v9, s[4:7], s21 offen offset:{32*a}")
        E(f"buffer_load_dwordx4 {vr(192+4*a,4)}, v9, s[4:7], s22 offen offset:{32*a}")
    E("v_lshrrev_b32 v10, 5, v2"); E("v_lshlrev_b32 v10, 9, v10"); E("v_bfe_u32 v11, v2, 2, 2"); E("v_lshl_add_u32 v10, v11, 6, v10")
    E("v_bfe_u32 v11, v2, 4, 1"); E("v_lshl_add_u32 v10, v11, 5, v10"); E("v_and_b32 v11, 3, v2"); E("v_lshl_add_u32 v10, v11, 3, v10")
    E("s_barrier")
    BF = 208
    def rdB(k):
        b = BF + 8*(k % 4)
        for th in range(2):
            for h in range(2):
                E(f"ds_read_b64_tr_b16 {vr(b+4*th+2*h,2)}, v10 offset:{32768*th+1024*k+256*h}")
    for k in range(3): rdB(k)
    for k in range(32):
        if k+3 < 32: rdB(k+3)
        E(f"s_waitcnt vmcnt({8+31-k+min(k,28)}) lgkmcnt({4*min(3, 31-k)})")
        for th in range(2):
            c = "0" if k == 0 else vr(16+16*th, 16)
            E(f"v_mfma_f32_32x32x16_bf16 {vr(16+16*th,16)}, {vr(48+4*k,4)}, {vr(BF+8*(k%4)+4*th,4)}, {c}")
        if k < 28: w2ld(k)
    E("s_barrier")
    E("v_and_b32 v11, 31, v2"); E("v_lshlrev_b32 v11, 3, v11"); E("v_add_u32 v11, 0x10000, v11")
    E("ds_read_b64 v[12:13], v11"); E("ds_read_b64 v[14:15], v11 offset:256")
    E("s_mul_i32 s21, s16, 224"); E("s_lshl_b32 s22, s20, 1"); E("s_add_u32 s21, s21, s22"); E("s_lshl_b32 s21, s21, 10")
    E(f"s_add_u32 s21, s21, {hex(HP)}"); E(f"s_add_u32 s22, s21, {112*1024}")
    E("s_waitcnt vmcnt(28) lgkmcnt(0)"); E("s_nop 4")
    for th in range(2):
        a = 16+16*th
        for r in range(16): E(f"v_fma_f32 v{a+r}, -v{12+2*th}, v{176+r}, v{a+r}")
        for r in range(16): E(f"v_fma_f32 v{a+r}, v{a+r}, v{13+2*th}, v{192+r}")
        for r in range(16): E(f"v_max_f32 v{a+r}, 0, v{a+r}")
        for r in range(16): E(f"v_mul_f32 v{a+r}, v{a+r}, v{a+r}")
        for r in range(8): E(f"v_cvt_pk_bf16_f32 v{160+8*th+r}, v{a+2*r}, v{a+2*r+1}")
        E(f"buffer_store_dwordx4 {vr(160+8*th,4)}, v8, s[4:7], s{21+th} offen sc1")
        E(f"buffer_store_dwordx4 {vr(164+8*th,4)}, v8, s[4:7], s{21+th} offen offset:1024 sc1")
    LBL("F_P2")
    E("s_waitcnt vmcnt(0)"); E("s_barrier"); TS(2)
    E("v_mov_b32 v9, 0"); E("v_mov_b32 v10, 1")
    E("s_lshl_b32 s21, s16, 10"); E(f"s_add_u32 s21, s21, {hex(FLG)}")
    E("s_cmp_lg_u32 s18, 0"); E("s_cbranch_scc1 F_NOPUB")
    E("s_lshl_b32 s22, s17, 7"); E("s_add_u32 s22, s22, s21")
    E("s_mov_b64 exec, 1")
    E("buffer_store_dword v10, v9, s[4:7], s22 offen sc1")
    E("s_mov_b64 exec, -1")
    LBL("F_NOPUB")
    E("s_lshl_b32 s22, s18, 7"); E("s_add_u32 s22, s22, s21")
    E("s_mov_b32 s38, 0x40000")
    LBL("F_POLL")
    E("buffer_load_dword v11, v9, s[4:7], s22 offen sc1")
    E("s_waitcnt vmcnt(0)")
    E("v_readfirstlane_b32 s23, v11")
    E("s_cmp_eq_u32 s23, 1"); E("s_cbranch_scc1 F_GO")
    E("s_sleep 2"); E("s_sub_u32 s38, s38, 1"); E("s_cmp_lg_u32 s38, 0"); E("s_cbranch_scc1 F_POLL")
    LBL("F_GO"); TS(3)
    ring = [16, 24, 32, 40, 160, 168, 240] + ([] if DBG else [248])
    RD = len(ring)
    def hld(k):
        for th in range(2): E(f"buffer_load_dwordx4 {vr(ring[k%RD]+4*th,4)}, v8, s[4:7], s{36+th} offen offset:{1024*(k&3)} sc1")
        if k & 3 == 3: E("s_add_u32 s36, s36, 4096"); E("s_add_u32 s37, s37, 4096")
    for k in range(RD): hld(k)
    E("s_lshr_b32 s24, s18, 2"); E("s_bfe_u32 s25, s18, 0x10001"); E("s_and_b32 s30, s18, 1")
    E("s_lshl_b32 s26, s17, 1"); E("s_add_u32 s26, s26, s24"); E("s_lshl_b32 s26, s26, 1"); E("s_add_u32 s26, s26, s30"); E("s_lshl_b32 s26, s26, 4")
    E("s_lshl_b32 s27, s16, 1"); E("s_add_u32 s27, s27, s25"); E("s_lshl_b32 s27, s27, 5")
    E("v_lshrrev_b32 v4, 5, v2"); E("v_and_b32 v5, 31, v2")
    E("v_lshlrev_b32 v6, 14, v4"); E("v_lshl_add_u32 v6, v5, 1, v6")
    E("s_lshl_b32 s28, s26, 12"); E("s_lshl_b32 s29, s27, 1"); E("s_add_u32 s28, s28, s29"); E(f"s_add_u32 s28, s28, {hex(X1T)}")
    E("v_lshlrev_b32 v7, 4, v4"); E("s_lshl_b32 s29, s26, 2"); E(f"s_add_u32 s29, s29, {MOD+5*512*4}")
    E("v_lshlrev_b32 v3, 3, v4"); E("s_lshl_b32 s31, s26, 1")
    issued = RD; extra = 0
    for k in range(14):
        younger = 2*(issued-1-k) + extra
        E(f"s_waitcnt vmcnt({younger})")
        for dt in range(2):
            for th in range(2):
                a = 176+16*(2*dt+th)
                E(f"v_mfma_f32_32x32x16_bf16 {vr(a,16)}, {vr(48+8*k+4*dt,4)}, {vr(ring[k%RD]+4*th,4)}, " + ("0" if k == 0 else vr(a, 16)))
        if issued < 14: hld(issued); issued += 1
        elif extra == 0:
            for r in range(8):
                E(f"buffer_load_ushort v{48+r}, v6, s[4:7], s28 offen"); E(f"s_add_u32 s28, s28, {4096 if (r & 3) != 3 else 5*4096}")
            for a in range(2): E(f"buffer_load_dwordx4 {vr(56+4*a,4)}, v7, s[4:7], s29 offen offset:{32*a}")
            for a in range(2): E(f"buffer_load_dwordx2 {vr(64+2*a,2)}, v3, s[12:15], s31 offen offset:{16*a}")
            extra = 12
    TS(4)
    E("v_lshl_add_u32 v1, v1, 14, v8"); E("s_nop 7"); E("s_nop 3")
    for tl in range(4):
        for a in range(4): E(f"ds_write_b128 v1, {vr(176+16*tl+4*a,4)} offset:{4096*tl+1024*a}")
    E("s_lshl_b32 s28, s18, 11"); E("v_add_u32 v1, s28, v8"); E("v_add_u32 v9, 0x10000, v1")
    E("s_waitcnt lgkmcnt(0)"); E("s_barrier")
    for w in range(8):
        for a in range(2): E(f"ds_read_b128 {vr(80+8*w+4*a,4)}, v{1 if w < 4 else 9} offset:{16384*(w&3)+1024*a}")
    E("v_lshlrev_b32 v6, 10, v5"); E("v_lshl_add_u32 v6, v4, 3, v6")
    E("s_lshl_b32 s28, s27, 10"); E("s_lshl_b32 s29, s26, 1"); E("s_add_u32 s28, s28, s29")
    E("s_waitcnt vmcnt(0)")
    for r in range(8): lo(48+r, 48+r)
    for a in range(4): lo(68+2*a, 64+a); hi(69+2*a, 64+a)
    E("s_waitcnt lgkmcnt(0)")
    for st in (32, 16, 8):
        for r in range(st): E(f"v_add_f32 v{80+r}, v{80+r}, v{80+st+r}")
    def rn8(b):
        for e in range(0, 8, 2):
            E(f"v_cvt_pk_bf16_f32 v24, v{b+e}, v{b+1+e}"); lo(b+e, 24); hi(b+1+e, 24)
    rn8(80)
    for r in range(8): E(f"v_add_f32 v{80+r}, v{80+r}, v{68+r}")
    rn8(80)
    for r in range(8): E(f"v_mul_f32 v{80+r}, v{80+r}, v{56+r}")
    rn8(80)
    for r in range(8): E(f"v_add_f32 v{80+r}, v{80+r}, v{48+r}")
    for e in range(4): E(f"v_cvt_pk_bf16_f32 v{24+e}, v{80+2*e}, v{81+2*e}")
    for a in range(2): E(f"buffer_store_dwordx2 {vr(24+2*a,2)}, v6, s[8:11], s28 offen offset:{16*a}")
    TS(7)
    LBL("F_END")
    E("s_endpgm")
    LBL("F_ST")
    for k in range(28): w2ld(k)
    for i in range(8):
        E(f"s_waitcnt vmcnt({35-i})"); E(f"ds_write_b128 v6, {vr(176+4*i,4)} offset:{4096*i}")
    E("v_lshrrev_b32 v10, 2, v2"); E("v_lshlrev_b32 v10, 6, v10"); E("v_and_b32 v11, 3, v2"); E("v_lshl_add_u32 v10, v11, 3, v10")
    for i in range(4): E(f"v_mov_b32 v{12+i}, 0x3f803f80")
    E("s_waitcnt lgkmcnt(0)"); E("s_barrier")
    def rdS(k):
        b = 160+16*(k % 3)
        for tg in range(4):
            for h in range(2):
                E(f"ds_read_b64_tr_b16 {vr(b+4*tg+2*h,2)}, v10 offset:{32768*(tg>>1)+32*(tg&1)+2048*k+1024*h}")
    rdS(0)
    for k in range(16):
        if k+1 < 16: rdS(k+1)
        E(f"s_waitcnt lgkmcnt({8 if k+1 < 16 else 0})")
        for tg in range(4):
            f = vr(160+16*(k % 3)+4*tg, 4)
            E(f"v_mfma_f32_16x16x32_bf16 {vr(16+4*tg,4)}, {f}, {f}, " + ("0" if k == 0 else vr(16+4*tg, 4)))
            E(f"v_mfma_f32_16x16x32_bf16 {vr(32+4*tg,4)}, v[12:15], {f}, " + ("0" if k == 0 else vr(32+4*tg, 4)))
    E("v_and_b32 v11, 3, v2")
    E("v_cmp_eq_u32 s[24:25], 1, v11"); E("v_cmp_eq_u32 s[26:27], 2, v11"); E("v_cmp_eq_u32 s[28:29], 3, v11")
    E("v_bfe_u32 v3, v2, 2, 2"); E("v_lshrrev_b32 v4, 4, v2"); E("v_cmp_eq_u32 vcc, v3, v4")
    E("v_and_b32 v5, 15, v2"); E("v_lshlrev_b32 v5, 3, v5"); E("v_add_u32 v5, 0x10000, v5"); E("s_nop 7")
    for tg in range(4):
        q = 16+4*tg; m = 32+4*tg
        E(f"v_cndmask_b32 v{q}, v{q}, v{q+1}, s[24:25]"); E(f"v_cndmask_b32 v{q}, v{q}, v{q+2}, s[26:27]"); E(f"v_cndmask_b32 v{q}, v{q}, v{q+3}, s[28:29]")
        E(f"v_mul_f32 v{m}, 0x3b000000, v{m}"); E(f"v_mul_f32 v{q}, 0x3b000000, v{q}")
        E(f"v_fma_f32 v{q}, -v{m}, v{m}, v{q}"); E(f"v_max_f32 v{q}, 0, v{q}")
        rnd(q, q); rnd(m, m)
        E(f"v_add_f32 v{q}, 0x3727c5ac, v{q}"); rnd(q, q)
        E(f"v_sqrt_f32 v{q}, v{q}"); E("s_nop 0"); rnd(q, q)
        E(f"v_rcp_f32 v{m+1}, v{q}")
    E("s_and_saveexec_b64 s[30:31], vcc")
    for tg in range(4): E(f"ds_write_b64 v5, {vr(32+4*tg,2)} offset:{128*tg}")
    E("s_mov_b64 exec, s[30:31]")
    E("s_waitcnt lgkmcnt(0)"); TS(1); E("s_barrier")
    E("s_branch F_P2")

KS = [("prep_kernel", 744, 256, 41216, 112, k_prep), ("conv_kernel", 568, 256, 8*CS+4608, 140, k_conv),
      ("ffn_kernel", 256, 512, 131072, 256, k_ffn)]
def build(path):
    ref = open("adaLN_cond__ssm_conv_s4__dense_activation_squared_relu__prompt.s.ref").read().split("\n")
    hdr = [l for l in ref if l.startswith(";") and "@launch" not in l]
    for n, g, b, lds, vg, f in KS: hdr.append(f"; @launch kernel={n} grid=({g},1,1) block=({b},1,1) lds={lds}")
    L.clear()
    for i, (n, g, b, lds, vg, f) in enumerate(KS): KIDX[0] = i; TSV[0] = 252 if vg > 250 else vg; f()
    out = hdr + ['.amdgcn_target "amdgcn-amd-amdhsa--gfx950"', ".text"] + L + ['.section .rodata,"a"']
    for n, g, b, lds, vg, f in KS:
        if DBG and vg < 250: vg += 4
        out += [".p2align 6", f".amdhsa_kernel {n}", f"  .amdhsa_next_free_vgpr {vg}", "  .amdhsa_next_free_sgpr 64",
                f"  .amdhsa_accum_offset {vg}", "  .amdhsa_group_segment_fixed_size 0", "  .amdhsa_kernarg_size 152",
                "  .amdhsa_user_sgpr_count 2", "  .amdhsa_user_sgpr_kernarg_segment_ptr 1", "  .amdhsa_system_sgpr_workgroup_id_x 1", ".end_amdhsa_kernel"]
    open(path, "w").write("\n".join(out) + "\n")
if __name__ == "__main__":
    import sys
    build(sys.argv[1] if len(sys.argv) > 1 else "adaLN_cond__ssm_conv_s4__dense_activation_squared_relu__prompt.s")
```

```python
L = []
def E(s): L.append("    " + s)
def LBL(s): L.append(s + ":")
def C(s): L.append("    ; " + s)
MOD, S1, S2, XT, KG, X1T, W1P, W2P, HP = 0x0, 0x4000, 0x6000, 0x600000, 0x500000, 0x10000, 0x210000, 0x3D0000, 0x600000
WSB = 0x2000000
FLG = 0x8000
KPAR, KCH = 4160, 8320
def vr(a, n): return f"v[{a}:{a+n-1}]"
def srd(d, karg_off, nbytes):
    E(f"s_load_dwordx2 s[{d}:{d+1}], s[0:1], {karg_off}")
    E(f"s_mov_b32 s{d+2}, {hex(nbytes)}")
    E(f"s_mov_b32 s{d+3}, 0x00020000")
def head(name):
    L.append(f".globl {name}\n.p2align 8\n.type {name},@function\n{name}:")
import os
DBG = int(os.environ.get("DBG", "0"))
KIDX = [0]; TSV = [252]
def TS(slot):
    if not DBG: return
    E("s_memrealtime s[60:61]")
    a = TSV[0]; E(f"v_lshrrev_b32 v{a}, 6, v0"); E(f"v_lshlrev_b32 v{a}, 5, v{a}")
    E("s_lshl_b32 s62, s2, 8"); E(f"s_add_u32 s62, s62, {hex(0x1800000 + KIDX[0]*0x40000 + slot*4)}")
    E("s_waitcnt lgkmcnt(0)"); E(f"v_mov_b32 v{a+1}, s60")
    E(f"buffer_store_dword v{a+1}, v{a}, s[4:7], s62 offen")
def lo(d, s): E(f"v_lshlrev_b32 v{d}, 16, v{s}")
def hi(d, s): E(f"v_and_b32 v{d}, 0xffff0000, v{s}")
def rnd(d, s):
    E(f"v_cvt_pk_bf16_f32 v{d}, v{s}, v{s}"); hi(d, d)
def wavesum(regs):
    steps = ["row_shr:1 row_mask:0xf bank_mask:0xf bound_ctrl:0", "row_shr:2 row_mask:0xf bank_mask:0xf bound_ctrl:0",
             "row_shr:4 row_mask:0xf bank_mask:0xf bound_ctrl:0", "row_shr:8 row_mask:0xf bank_mask:0xf bound_ctrl:0",
             "row_bcast:15 row_mask:0xa bank_mask:0xf", "row_bcast:31 row_mask:0xc bank_mask:0xf"]
    E("s_nop 1")
    for st in steps:
        for r in regs: E(f"v_add_f32_dpp v{r}, v{r}, v{r} {st}")
        if len(regs) < 3: E("s_nop 1")
    E("s_nop 1")

def k_prep():
    head("prep_kernel")
    srd(4, 144, WSB)
    TS(0)
    E("s_cmp_lt_u32 s2, 96"); E("s_cbranch_scc1 P_MOD")
    E("s_cmp_lt_u32 s2, 224"); E("s_cbranch_scc1 P_LN")
    E("s_cmp_lt_u32 s2, 280"); E("s_cbranch_scc1 P_W2")
    E("s_endpgm")
    LBL("P_MOD")
    srd(8, 120, 512*3072*2); srd(12, 112, 1024)
    E("v_and_b32 v1, 3, v0"); E("v_lshrrev_b32 v2, 2, v0")
    E("v_mul_u32_u24 v3, 49152, v2"); E("v_lshl_add_u32 v3, v1, 4, v3")
    E("s_lshl_b32 s17, s2, 6")
    E("v_lshlrev_b32 v4, 4, v2")
    E("s_waitcnt lgkmcnt(0)")
    E("buffer_load_dwordx4 v[8:11], v4, s[12:15], 0 offen")
    for i in range(8):
        E(f"buffer_load_dwordx4 {vr(48+4*i,4)}, v3, s[8:11], s17 offen")
        E("s_add_u32 s17, s17, 6144")
    E("v_lshlrev_b32 v5, 7, v0"); E("v_mov_b32 v6, 0"); E(f"s_mov_b32 s18, {hex(FLG)}")
    E("buffer_store_dword v6, v5, s[4:7], s18 offen")
    E("s_waitcnt vmcnt(9)")
    for i in range(4): lo(16+2*i, 8+i); hi(17+2*i, 8+i)
    for i in range(8): E(f"v_mul_f32 v{32+i}, 0xbfb8aa3b, v{16+i}")
    for i in range(8): E(f"v_exp_f32 v{32+i}, v{32+i}")
    for i in range(8): E(f"v_add_f32 v{32+i}, 1.0, v{32+i}")
    for i in range(8): E(f"v_rcp_f32 v{32+i}, v{32+i}")
    for i in range(8): E(f"v_mul_f32 v{16+i}, v{16+i}, v{32+i}")
    for i in range(8): rnd(16+i, 16+i)
    for j in range(8): E(f"v_mov_b32 v{32+j}, 0")
    for i in range(8):
        E(f"s_waitcnt vmcnt({8-i})")
        for j in range(4): lo(40+2*j, 48+4*i+j); hi(41+2*j, 48+4*i+j)
        for j in range(8): E(f"v_fmac_f32 v{32+j}, v{40+j}, v{16+i}")
    E("v_lshlrev_b32 v5, 5, v0")
    E("ds_write_b128 v5, v[32:35]"); E("ds_write_b128 v5, v[36:39] offset:16")
    E("s_waitcnt lgkmcnt(0)"); E("s_barrier")
    E("v_and_b32 v6, 63, v0"); E("v_lshlrev_b32 v6, 2, v6")
    for i in range(32): E(f"ds_read_b32 v{48+i}, v6 offset:{256*i}")
    E("s_waitcnt lgkmcnt(0)")
    for st in (16, 8, 4, 2, 1):
        for i in range(st): E(f"v_add_f32 v{48+i}, v{48+i}, v{48+i+st}")
    E("v_mov_b32 v49, v48"); E("s_nop 1"); E("v_permlane32_swap_b32 v48, v49"); E("s_nop 1"); E("v_add_f32 v48, v48, v49")
    rnd(48, 48)
    E("s_lshl_b32 s17, s2, 7"); E("v_and_b32 v6, 127, v6")
    E(f"buffer_store_dword v48, v6, s[4:7], s17 offen")
    TS(7); E("s_endpgm")
    LBL("P_LN")
    srd(8, 0, 2048*512*2)
    E("s_sub_u32 s16, s2, 96")
    E("v_lshrrev_b32 v1, 6, v0"); E("v_and_b32 v2, 63, v0")
    E("v_lshlrev_b32 v3, 12, v1"); E("v_lshl_add_u32 v3, v2, 4, v3")
    E("s_lshl_b32 s17, s16, 14")
    E("s_waitcnt lgkmcnt(0)")
    for r in range(4): E(f"buffer_load_dwordx4 {vr(8+4*r,4)}, v3, s[8:11], s17 offen offset:{1024*r}")
    for r in range(4):
        E(f"s_waitcnt vmcnt({3-r})")
        for j in range(4): lo(32+8*r+2*j, 8+4*r+j); hi(33+8*r+2*j, 8+4*r+j)
        E(f"v_add_f32 v{24+r}, v{32+8*r}, v{33+8*r}")
        for j in range(2, 8): E(f"v_add_f32 v{24+r}, v{24+r}, v{32+8*r+j}")
    wavesum([24, 25, 26, 27])
    for r in range(4): E(f"v_readlane_b32 s{20+r}, v{24+r}, 63")
    E("s_nop 1")
    for r in range(4): E(f"v_mov_b32 v{24+r}, s{20+r}")
    for r in range(4): E(f"v_mul_f32 v{24+r}, 0x3b000000, v{24+r}")
    for r in range(4):
        E(f"v_mov_b32 v{28+r}, 0")
        for j in range(8):
            E(f"v_sub_f32 v64, v{32+8*r+j}, v{24+r}"); E(f"v_fmac_f32 v{28+r}, v64, v64")
    wavesum([28, 29, 30, 31])
    for r in range(4): E(f"v_readlane_b32 s{20+r}, v{28+r}, 63")
    E("s_nop 1")
    for r in range(4): E(f"v_mov_b32 v{28+r}, s{20+r}")
    for r in range(4): E(f"v_mul_f32 v{28+r}, 0x3b000000, v{28+r}")
    for r in range(4): rnd(28+r, 28+r); rnd(24+r, 24+r)
    for r in range(4): E(f"v_add_f32 v{28+r}, 0x3727c5ac, v{28+r}")
    for r in range(4): rnd(28+r, 28+r)
    for r in range(4): E(f"v_sqrt_f32 v{28+r}, v{28+r}")
    for r in range(4): rnd(28+r, 28+r)
    for r in range(4): E(f"v_rcp_f32 v{28+r}, v{28+r}")
    E("s_nop 0")
    for r in range(4):
        for j in range(0, 8, 2):
            a = 32+8*r+j
            E(f"v_sub_f32 v64, v{a}, v{24+r}"); E(f"v_sub_f32 v65, v{a+1}, v{24+r}")
            E("v_cvt_pk_bf16_f32 v66, v64, v65"); lo(64, 66); hi(65, 66)
            E(f"v_mul_f32 v64, v64, v{28+r}"); E(f"v_mul_f32 v65, v65, v{28+r}")
            E(f"v_cvt_pk_bf16_f32 v{72+4*j+r}, v64, v{a}")
            E(f"v_cvt_pk_bf16_f32 v{72+4*(j+1)+r}, v65, v{a+1}")
    E("v_mul_u32_u24 v4, 528, v2"); E("v_lshl_add_u32 v4, v1, 4, v4")
    for j in range(8): E(f"ds_write_b128 v4, {vr(72+4*j,4)} offset:{64*j}")
    E("s_waitcnt lgkmcnt(0)"); E("s_barrier")
    E("v_and_b32 v5, 3, v0"); E("v_lshrrev_b32 v6, 2, v0")
    E("v_lshrrev_b32 v7, 3, v6"); E("v_mul_u32_u24 v7, 528, v7")
    E("v_and_b32 v4, 7, v6"); E("v_lshl_add_u32 v7, v4, 6, v7"); E("v_lshl_add_u32 v7, v5, 4, v7")
    for i in range(8): E(f"ds_read_b128 {vr(72+4*i,4)}, v7 offset:{528*8*i}")
    E("v_lshlrev_b32 v6, 13, v6"); E("v_lshl_add_u32 v6, v5, 4, v6")
    E("s_lshl_b32 s17, s16, 6"); E(f"s_add_u32 s17, s17, {hex(XT)}")
    for i in range(8):
        E(f"s_waitcnt lgkmcnt({7-i})")
        E(f"buffer_store_dwordx4 {vr(72+4*i,4)}, v6, s[4:7], s17 offen")
        E("s_add_u32 s17, s17, 0x80000")
    TS(7); E("s_endpgm")
    LBL("P_W2")
    srd(8, 96, 1792*512*2)
    E("s_sub_u32 s16, s2, 224")
    E("v_lshrrev_b32 v1, 6, v0"); E("v_and_b32 v2, 63, v0")
    E("v_lshrrev_b32 v3, 1, v1"); E("v_and_b32 v4, 1, v1")
    E("v_lshlrev_b32 v5, 14, v3"); E("v_lshl_add_u32 v5, v4, 12, v5"); E("v_lshl_add_u32 v5, v2, 4, v5")
    E("s_lshl_b32 s17, s16, 15"); E("s_add_u32 s18, s17, 8192")
    E("s_mov_b32 s20, 0x05040100"); E("s_mov_b32 s21, 0x07060302")
    E("s_waitcnt lgkmcnt(0)")
    for e in range(8): E(f"buffer_load_dwordx4 {vr(8+4*e,4)}, v5, s[8:11], s{17+(e>>2)} offen offset:{1024*(e&3)}")
    E("v_lshrrev_b32 v6, 2, v2"); E("v_mul_u32_u24 v6, 112, v6"); E("v_add_u32 v6, v6, v3")
    E("v_lshlrev_b32 v6, 10, v6"); E("v_and_b32 v7, 3, v2"); E("v_lshl_add_u32 v6, v7, 7, v6"); E("v_lshl_add_u32 v6, v4, 9, v6")
    E("s_lshl_b32 s17, s16, 11"); E(f"s_add_u32 s17, s17, {hex(W2P)}")
    E("s_waitcnt vmcnt(0)")
    for dd in range(8):
        for ep in range(4):
            E(f"v_perm_b32 v{40+4*dd+ep}, v{8+4*(2*ep+1)+(dd>>1)}, v{8+4*(2*ep)+(dd>>1)}, s{20+(dd&1)}")
        E(f"buffer_store_dwordx4 {vr(40+4*dd,4)}, v6, s[4:7], s17 offen offset:{16*dd}")
    TS(7); E("s_endpgm")

class Cnt:
    def __init__(s, name, mx): s.n = name; s.l = []; s.mx = mx
    def add(s, tag): s.l.append(tag)
    def need(s, tag):
        i = max(k for k, t in enumerate(s.l) if t == tag)
        return min(s.mx, len(s.l)-1-i)
```

```python
from gen1 import *
CS = 4160
def k_conv():
    head("conv_kernel")
    srd(4, 144, WSB); TS(0)
    E("s_cmp_lt_u32 s2, 56"); E("s_cbranch_scc1 C_W1")
    E("s_cmp_lt_u32 s2, 568"); E("s_cbranch_scc1 C_CV")
    E("s_endpgm")
    LBL("C_W1")
    srd(8, 80, 512*1792*2); srd(12, 88, 1792*2)
    E("v_and_b32 v1, 3, v0"); E("v_lshrrev_b32 v2, 2, v0")
    E("v_mul_u32_u24 v3, 28672, v2"); E("v_lshl_add_u32 v3, v1, 4, v3")
    E("s_lshl_b32 s17, s2, 6")
    E("v_lshlrev_b32 v4, 5, v2")
    E("s_waitcnt lgkmcnt(0)")
    E(f"s_mov_b32 s18, {MOD+4*512*4}"); E(f"s_mov_b32 s19, {MOD+3*512*4}")
    E("buffer_load_dwordx4 v[8:11], v4, s[4:7], s18 offen"); E("buffer_load_dwordx4 v[12:15], v4, s[4:7], s18 offen offset:16")
    E("buffer_load_dwordx4 v[16:19], v4, s[4:7], s19 offen"); E("buffer_load_dwordx4 v[20:23], v4, s[4:7], s19 offen offset:16")
    for e in range(8):
        E(f"buffer_load_dwordx4 {vr(24+4*e,4)}, v3, s[8:11], s17 offen"); E("s_add_u32 s17, s17, 3584")
    E("v_and_b32 v5, 31, v0"); E("v_lshlrev_b32 v5, 1, v5"); E("s_lshl_b32 s17, s2, 6")
    E("buffer_load_ushort v7, v5, s[12:15], s17 offen")
    E("v_lshlrev_b32 v6, 9, v2"); E("v_lshl_add_u32 v6, v1, 7, v6")
    E("s_lshl_b32 s17, s2, 15"); E(f"s_add_u32 s17, s17, {hex(W1P)}")
    E("s_mov_b32 s20, 0x3f803f80")
    E("s_waitcnt vmcnt(9)")
    for e in range(8): E(f"v_add_f32 v{8+e}, 1.0, v{8+e}")
    for e in range(8): rnd(8+e, 8+e)
    for i in range(16): E(f"v_mov_b32 v{96+i}, 0")
    E("s_waitcnt vmcnt(1)")
    for ff in range(8):
        for e in range(8): (hi if ff & 1 else lo)(56+e, 24+4*e+(ff >> 1))
        for e in range(8): E(f"v_fmac_f32 v{104+ff}, v{56+e}, v{16+e}")
        for e in range(8): E(f"v_mul_f32 v{56+e}, v{56+e}, v{8+e}")
        for ep in range(4): E(f"v_cvt_pk_bf16_f32 v{64+4*ff+ep}, v{56+2*ep}, v{57+2*ep}")
        E(f"buffer_store_dwordx4 {vr(64+4*ff,4)}, v6, s[4:7], s17 offen offset:{16*ff}")
        for ep in range(4): E(f"v_dot2_f32_bf16 v{96+ff}, v{64+4*ff+ep}, s20, v{96+ff}")
    E("s_nop 3")
    E("v_lshlrev_b32 v4, 5, v0")
    E("ds_write_b128 v4, v[96:99]"); E("ds_write_b128 v4, v[100:103] offset:16")
    E("ds_write_b128 v4, v[104:107] offset:8192"); E("ds_write_b128 v4, v[108:111] offset:8208")
    E("s_waitcnt lgkmcnt(0)"); E("s_barrier")
    E("v_bfe_u32 v1, v0, 5, 1"); E("v_lshlrev_b32 v5, 1, v5"); E("v_lshl_add_u32 v5, v1, 13, v5")
    for i in range(64): E(f"ds_read_b32 v{8+i}, v5 offset:{128*i}")
    E("s_waitcnt lgkmcnt(0) vmcnt(8)")
    for st in (32, 16, 8, 4, 2, 1):
        for i in range(st): E(f"v_add_f32 v{8+i}, v{8+i}, v{8+i+st}")
    lo(7, 7); E("v_cvt_f32_u32 v1, v1"); E("v_fmac_f32 v8, v7, v1")
    E("s_lshl_b32 s17, s2, 7"); E(f"s_add_u32 s17, s17, {hex(S1)}")
    E("buffer_store_dword v8, v5, s[4:7], s17 offen")
    TS(7); E("s_endpgm")
    LBL("C_CV")
    U = 8*CS; TBL = U+4608; PAR = 12288
    for i in range(6): srd(32+4*i, 8+8*i, 512*128*2)
    srd(12, 56, 1024)
    E("s_load_dwordx2 s[8:9], s[0:1], 64")
    E("s_sub_u32 s16, s2, 56")
    E("s_lshl_b32 s17, s16, 2"); E("s_and_b32 s18, s16, 0x1fe"); E("s_lshl_b32 s18, s18, 1")
    E("v_lshlrev_b32 v1, 5, v0"); E("v_lshlrev_b32 v2, 4, v0")
    E("s_lshl_b32 s19, s16, 13"); E(f"s_add_u32 s19, s19, {hex(XT)}")
    E("s_lshl_b32 s20, s16, 8"); E("s_lshl_b32 s21, s16, 1")
    E("s_add_u32 s22, s17, 2048"); E("s_add_u32 s23, s17, 4096")
    E("v_and_b32 v73, 127, v0"); E("v_lshlrev_b32 v74, 1, v73"); E("v_mov_b32 v4, 0")
    E("s_waitcnt lgkmcnt(0)")
    for i in range(6): E(f"buffer_load_ushort v{16+i}, v74, s[{32+4*i}:{35+4*i}], s20 offen")
    E("buffer_load_ushort v22, v4, s[12:15], s21 offen")
    E("s_load_dword s24, s[4:5], s17"); E("s_load_dword s25, s[4:5], s22"); E("s_load_dword s26, s[4:5], s23")
    E("s_load_dword s27, s[8:9], s18")
    E("buffer_load_dwordx4 v[8:11], v1, s[4:7], s19 offen"); E("buffer_load_dwordx4 v[12:15], v1, s[4:7], s19 offen offset:16")
    for i in range(1, 4): E(f"v_mov_b32 v{4+i}, 0")
    E("v_min_u32 v3, 29, v0"); E("v_lshlrev_b32 v3, 4, v3")
    E(f"ds_write_b128 v3, v[4:7] offset:{U}")
    E(f"ds_write_b32 v4, v4 offset:{TBL+32}")
    E("v_and_b32 v3, 7, v0"); E(f"v_mul_u32_u24 v3, {CS}, v3")
    E("v_and_b32 v64, 63, v0"); E("v_lshrrev_b32 v65, 6, v0")
    E("v_lshrrev_b32 v66, 4, v64"); E("v_bfe_u32 v67, v64, 3, 1")
    E("v_sub_u32 v68, v66, v67"); E("v_lshlrev_b32 v68, 4, v68"); E("v_add_u32 v68, v68, v3")
    E("v_lshlrev_b32 v69, 7, v65"); E("v_sub_u32 v68, v68, v69"); E(f"v_add_u32 v68, {4048-3584-64}, v68")
    E("v_and_b32 v70, 15, v64"); E("v_lshlrev_b32 v71, 5, v70"); E("v_lshl_add_u32 v71, v66, 4, v71")
    E("v_sub_u32 v69, v71, v69"); E(f"v_add_u32 v69, {U+448-64}, v69")
    E("v_lshlrev_b32 v71, 1, v71"); E("v_lshlrev_b32 v72, 4, v66"); E("v_sub_u32 v71, v71, v72"); E("v_lshl_add_u32 v71, v65, 13, v71")
    E("v_and_b32 v24, 3, v64"); E("v_bfe_u32 v25, v64, 2, 2")
    E("v_lshlrev_b32 v28, 7, v70"); E("v_cvt_f32_u32 v28, v28")
    E("s_mov_b32 s28, 0x06020404"); E("v_lshlrev_b32 v29, 3, v24"); E("v_lshrrev_b32 v29, v29, s28"); E("v_and_b32 v29, 7, v29")
    E("v_cmp_eq_u32 vcc, 1, v24"); E("v_mov_b32 v26, 0"); E("v_mov_b32 v27, 512"); E("v_cndmask_b32 v26, v26, v27, vcc")
    E("v_add_u32 v29, v29, v26"); E("v_lshl_add_u32 v29, v25, 7, v29"); E("v_cvt_f32_u32 v29, v29")
    E("v_lshlrev_b32 v30, 7, v25"); E("v_add_u32 v27, 2045, v25"); E("v_cmp_lt_u32 vcc, 1, v25"); E("s_nop 1"); E("v_cndmask_b32 v30, v30, v27, vcc")
    E("v_lshl_add_u32 v30, v24, 1, v30"); E("v_add_u32 v30, 1, v30"); E("v_cvt_f32_u32 v30, v30")
    E("v_lshlrev_b32 v31, 3, v70"); E("v_cvt_f32_u32 v31, v31")
    GA = 124
    E("v_lshlrev_b32 v23, 3, v0"); E("v_sub_u32 v23, 2047, v23"); E("v_cvt_f32_i32 v23, v23")
    for x in range(16): E(f"v_subrev_f32 v{GA+x}, {float(x)!r}, v23") if x in (0,1,2,4) else E(f"v_add_f32 v{GA+x}, {hex(__import__('struct').unpack('<I', __import__('struct').pack('<f', -float(x)))[0])}, v23")
    for x in range(0, 16, 2):
        E(f"v_cvt_pk_bf16_f32 v24, v{GA+x}, v{GA+x+1}"); lo(GA+x, 24); hi(GA+x+1, 24)
    for x in range(15): E(f"v_cvt_i32_f32 v{GA+x}, v{GA+x}")
    E("v_mov_b32 v25, 32")
    for x in range(15):
        if x >= 8: E(f"v_cmp_gt_i32 vcc, 0, v{GA+x}")
        E(f"v_lshrrev_b32 v24, 3, v{GA+x}"); E(f"v_add_lshl_u32 v{GA+x}, v{GA+x}, v24, 2")
        if x >= 8: E(f"v_cndmask_b32 v{GA+x}, v{GA+x}, v25, vcc")
    E("s_waitcnt vmcnt(2)")
    for i in range(7): lo(16+i, 16+i)
    E("v_mul_f32 v22, 0x3fb8aa3b, v22"); E("v_exp_f32 v22, v22"); E("s_nop 0"); rnd(22, 22)
    E("v_mul_f32 v24, v22, v16"); E("v_mul_f32 v24, 0x3fb8aa3b, v24")
    E("v_mul_f32 v25, v22, v17"); E("v_mul_f32 v25, 0.15915494, v25")
    E("v_mul_f32 v18, v22, v18"); E("v_mul_f32 v19, v22, v19")
    E("v_mul_f32 v26, v20, v18"); E("v_fma_f32 v26, -v21, v19, v26")
    E("v_mul_f32 v27, v20, v19"); E("v_fmac_f32 v27, v21, v18")
    E("v_lshlrev_b32 v73, 4, v73")
    E(f"ds_write_b128 v73, v[24:27] offset:{PAR}")
    E("s_waitcnt lgkmcnt(0)"); E("s_barrier"); TS(3)
    E("v_lshlrev_b32 v73, 9, v65"); E("v_lshl_add_u32 v73, v66, 6, v73")
    for s in range(2):
        for q in range(4): E(f"ds_read_b128 {vr(32+16*s+4*q,4)}, v73 offset:{PAR+256*s+16*q}")
    for s in range(2):
        E(f"s_waitcnt lgkmcnt({4*(1-s)})")
        for q in range(4):
            p = 32+16*s+4*q
            for t in range(4):
                E(f"v_mul_f32 v{76+t}, v{p}, v{28+t}"); E(f"v_mul_f32 v{80+t}, v{p+1}, v{28+t}")
            for t in range(4): E(f"v_fract_f32 v{80+t}, v{80+t}")
            for t in range(4): E(f"v_exp_f32 v{76+t}, v{76+t}")
            for t in range(4): E(f"v_cos_f32 v{84+t}, v{80+t}")
            for t in range(4): E(f"v_sin_f32 v{80+t}, v{80+t}")
            for t in range(4): E(f"v_mul_f32 v{84+t}, v{84+t}, v{76+t}")
            for t in range(4): E(f"v_mul_f32 v{80+t}, v{80+t}, v{76+t}")
            for t in range(3): E(f"v_cvt_pk_bf16_f32 v{88+4*t+q}, v{84+t}, v{80+t}")
            E(f"v_mul_f32 v76, v{p+2}, v87"); E(f"v_fma_f32 v76, -v{p+3}, v83, v76")
            E(f"v_mul_f32 v77, v{p+2}, v83"); E(f"v_fmac_f32 v77, v{p+3}, v87")
            E(f"v_cvt_pk_bf16_f32 v{100+q}, v76, -v77")
        E("s_nop 1")
        for t in range(3):
            E(f"v_mfma_f32_16x16x32_bf16 {vr(104+4*t,4)}, {vr(88+4*t,4)}, v[100:103], " + ("0" if s == 0 else vr(104+4*t,4)))
    E("v_mov_b32 v72, s25"); E("v_add_f32 v72, 1.0, v72"); rnd(72, 72)
    E("s_and_b32 s28, s16, 1"); E("s_lshl_b32 s28, s28, 4"); E("s_lshr_b32 s27, s27, s28"); E("s_lshl_b32 s27, s27, 16")
    E("v_readfirstlane_b32 s29, v65")
    E("s_waitcnt vmcnt(0)")
    for e in range(8): lo(16+e, 8+e)
    for t in range(3): E(f"ds_write_b128 v2, {vr(104+4*t,4)} offset:{4096*t}")
    for e in range(8): E(f"v_mul_f32 v{16+e}, v{16+e}, v72")
    for e in range(0, 8, 2):
        E(f"v_cvt_pk_bf16_f32 v24, v{16+e}, v{17+e}"); lo(16+e, 24); hi(17+e, 24)
    for e in range(8): E(f"v_add_f32 v{16+e}, s24, v{16+e}")
    for e in range(0, 8, 2): E(f"v_cvt_pk_bf16_f32 v{24+e//2}, v{16+e}, v{17+e}")
    E(f"ds_write_b128 v2, v[24:27] offset:{U+480}")
    E("v_mul_u32_u24 v28, 36, v70"); E("v_mul_u32_u24 v30, 576, v66"); E("v_add_u32 v30, v30, v28")
    E("v_lshlrev_b32 v31, 2, v66"); E("v_add_u32 v31, 9204, v31"); E("v_add_u32 v31, v31, v28")
    E("v_cmp_lt_u32 vcc, 1, v66"); E("v_mul_u32_u24 v29, 2304, v66"); E("v_add_u32 v29, v29, v28"); E("v_cndmask_b32 v31, v30, v31, vcc")
    E("v_lshlrev_b32 v73, 4, v64"); E("v_lshl_add_u32 v73, v65, 12, v73")
    E("s_waitcnt lgkmcnt(0)"); E("s_barrier"); TS(4)
    E("s_cmp_eq_u32 s29, 3"); E("s_cbranch_scc1 C_T3")
    for w in range(4): E(f"ds_read_b128 {vr(32+4*w,4)}, v73 offset:{1024*w}")
    E("s_waitcnt lgkmcnt(0)")
    for r in range(4):
        E(f"v_add_f32 v{32+r}, v{32+r}, v{36+r}"); E(f"v_add_f32 v{40+r}, v{40+r}, v{44+r}")
    for r in range(4): E(f"v_add_f32 v{32+r}, v{32+r}, v{40+r}")
    E("s_cmp_eq_u32 s29, 1"); E("s_cbranch_scc1 C_T1"); E("s_cmp_eq_u32 s29, 2"); E("s_cbranch_scc1 C_T2")
    for r in range(4): E(f"ds_write_b32 v29, v{32+r} offset:{TBL+576*r}")
    E("s_branch C_T3")
    LBL("C_T1")
    for r in range(4): E(f"ds_write_b32 v30, v{32+r} offset:{TBL+4*[4,580,2,6][r]}")
    E("s_branch C_T3")
    LBL("C_T2")
    for r in range(4): E(f"ds_write_b32 v31, v{32+r} offset:{TBL+4*(1+2*r)}")
    LBL("C_T3")
    E("s_waitcnt lgkmcnt(0)"); E("s_barrier")
    for x in range(15): E(f"ds_read_b32 v{32+x}, v{GA+x} offset:{TBL}")
    E("ds_write_b128 v3, v[4:7] offset:4096")
    E("s_waitcnt lgkmcnt(1)")
    for p in range(2):
        for a in range(2):
            for k in range(a, 6+a): E(f"v_cvt_pk_bf16_f32 v{76+8*(2*p+a)+k-a}, v{32+2*k+p}, v{33+2*k+p}")
    for c in range(8):
        sft = 7-c; p = sft & 1; st = sft >> 1; a = st & 1
        E(f"ds_write_b128 v2, {vr(76+8*(2*p+a)+st-a,4)} offset:{CS*c}")
    E("s_waitcnt lgkmcnt(0)"); E("s_barrier")
    TS(1)
    T0, B0, AC = 76, 108, 32
    for s in range(2):
        o = 64*(1-s)
        for q in range(8):
            E(f"ds_read_b128 {vr(T0+4*q,4)}, v68 offset:{o+(7-q)*512}")
            E(f"ds_read_b128 {vr(B0+4*q,4)}, v69 offset:{o+512*q}")
        done = set()
        for n in range(8):
            E(f"s_waitcnt lgkmcnt({2*(7-n)})")
            for q in range(n+1):
                for i in range(n+1):
                    if (q == n or i == n) and q+i <= 7:
                        J = q+i
                        c = "0" if (s == 0 and J not in done) else vr(AC+4*J, 4)
                        done.add(J)
                        E(f"v_mfma_f32_16x16x32_bf16 {vr(AC+4*J,4)}, {vr(T0+4*q,4)}, {vr(B0+4*i,4)}, {c}")
    TS(2); E("s_barrier"); E("s_nop 7")
    for J in range(8): E(f"ds_write_b128 v71, {vr(AC+4*J,4)} offset:{1024*J}")
    E("s_waitcnt lgkmcnt(0)"); E("s_barrier")
    for w in range(4):
        E(f"ds_read_b128 {vr(32+8*w,4)}, v1 offset:{8192*w}"); E(f"ds_read_b128 {vr(36+8*w,4)}, v1 offset:{8192*w+16}")
    for e in range(0, 8, 2): lo(16+e, 24+e//2); hi(17+e, 24+e//2)
    for e in range(8): E(f"v_mul_f32 v{16+e}, s27, v{16+e}")
    def rnd8(b):
        for e in range(0, 8, 2):
            E(f"v_cvt_pk_bf16_f32 v28, v{b+e}, v{b+1+e}"); lo(b+e, 28); hi(b+1+e, 28)
    rnd8(16)
    for e in range(8): hi(8+e, 8+e)
    E("s_waitcnt lgkmcnt(0)")
    for e in range(8):
        E(f"v_add_f32 v{32+e}, v{32+e}, v{40+e}"); E(f"v_add_f32 v{48+e}, v{48+e}, v{56+e}")
    for e in range(8): E(f"v_add_f32 v{32+e}, v{32+e}, v{48+e}")
    rnd8(32)
    for e in range(8): E(f"v_add_f32 v{32+e}, v{32+e}, v{16+e}")
    rnd8(32)
    for e in range(8): E(f"v_mul_f32 v{32+e}, s26, v{32+e}")
    rnd8(32)
    for e in range(8): E(f"v_add_f32 v{32+e}, v{32+e}, v{8+e}")
    for e in range(0, 8, 2): E(f"v_cvt_pk_bf16_f32 v{24+e//2}, v{32+e}, v{33+e}")
    E("s_lshl_b32 s19, s16, 12"); E(f"s_add_u32 s19, s19, {hex(X1T)}")
    E("buffer_store_dwordx4 v[24:27], v2, s[4:7], s19 offen")
    TS(7); E("s_endpgm")
```

```python
from gen2 import *
def k_ffn():
    head("ffn_kernel")
    srd(4, 144, WSB); srd(8, 128, 2048*512*2); srd(12, 104, 1024)
    E("s_cmp_ge_u32 s2, 256"); E("s_cbranch_scc1 F_END")
    E("s_and_b32 s16, s2, 7"); E("s_lshl_b32 s16, s16, 2"); E("s_bfe_u32 s17, s2, 0x20003"); E("s_add_u32 s16, s16, s17")
    E("s_lshr_b32 s17, s2, 5")
    E("v_lshrrev_b32 v1, 6, v0"); E("v_and_b32 v2, 63, v0"); E("v_lshlrev_b32 v8, 4, v2")
    E("v_readfirstlane_b32 s18, v1")
    E("v_and_b32 v3, 7, v0"); E("v_lshrrev_b32 v4, 3, v0")
    E("v_lshlrev_b32 v5, 12, v4"); E("v_lshl_add_u32 v5, v3, 4, v5")
    E("s_lshl_b32 s19, s16, 7"); E(f"s_add_u32 s19, s19, {hex(X1T)}")
    E("s_mul_i32 s32, s18, 14"); E("s_mul_i32 s33, s17, 224"); E("s_add_u32 s33, s33, s32"); E("s_lshl_b32 s33, s33, 10")
    E(f"s_add_u32 s34, s33, {hex(W2P)}"); E(f"s_add_u32 s35, s34, {112*1024}")
    E("s_mul_i32 s33, s16, 224"); E("s_add_u32 s33, s33, s32"); E("s_lshl_b32 s33, s33, 10")
    E(f"s_add_u32 s36, s33, {hex(HP)}"); E(f"s_add_u32 s37, s36, {112*1024}")
    E("s_waitcnt lgkmcnt(0)"); TS(0)
    E("v_lshlrev_b32 v6, 6, v4"); E("v_and_b32 v7, 3, v3"); E("v_lshl_add_u32 v6, v7, 4, v6")
    E("v_lshrrev_b32 v7, 2, v3"); E("v_lshl_add_u32 v6, v7, 15, v6")
    E("s_mul_i32 s20, s17, 7"); E("s_add_u32 s20, s20, s18")
    def w2ld(k):
        ks, dt = k >> 1, k & 1
        E(f"buffer_load_dwordx4 {vr(48+4*k,4)}, v8, s[4:7], s{34+dt} offen offset:{1024*(ks&3)}")
        if dt == 1 and ks & 3 == 3: E("s_add_u32 s34, s34, 4096"); E("s_add_u32 s35, s35, 4096")
    E("s_cmp_eq_u32 s18, 7"); E("s_cbranch_scc1 F_ST")
    E("s_lshl_b32 s21, s20, 15"); E(f"s_add_u32 s21, s21, {hex(W1P)}")
    VM = Cnt("vm", 63); LG = Cnt("lg", 15)
    def tld(i):
        E(f"buffer_load_dwordx4 {vr(176+4*i,4)}, v5, s[4:7], s19 offen"); E("s_add_u32 s19, s19, 0x40000"); VM.add(("T", i))
    def twr(i):
        E(f"s_waitcnt vmcnt({VM.need(('T', i))})"); E(f"ds_write_b128 v6, {vr(176+4*i,4)} offset:{4096*i}"); LG.add(("W", i))
    for c in range(4):
        tld(2*c); tld(2*c+1)
        for k in range(8*c, 8*c+8):
            E(f"buffer_load_dwordx4 {vr(48+4*k,4)}, v8, s[4:7], s21 offen offset:{1024*(k&3)}"); VM.add(("A", k))
            if k & 3 == 3: E("s_add_u32 s21, s21, 4096")
    E("v_lshrrev_b32 v9, 5, v2"); E("v_lshlrev_b32 v9, 4, v9")
    E("s_lshl_b32 s21, s20, 7"); E(f"s_add_u32 s22, s21, {hex(S2)}"); E(f"s_add_u32 s21, s21, {hex(S1)}")
    E("v_lshrrev_b32 v10, 5, v2"); E("v_lshlrev_b32 v10, 9, v10"); E("v_bfe_u32 v11, v2, 2, 2"); E("v_lshl_add_u32 v10, v11, 6, v10")
    E("v_bfe_u32 v11, v2, 4, 1"); E("v_lshl_add_u32 v10, v11, 5, v10"); E("v_and_b32 v11, 3, v2"); E("v_lshl_add_u32 v10, v11, 3, v10")
    twr(0); twr(1)
    BF = 208
    def rdB(k):
        b = BF + 8*(k % 4)
        for th in range(2):
            for h in range(2):
                E(f"ds_read_b64_tr_b16 {vr(b+4*th+2*h,2)}, v10 offset:{32768*th+1024*k+256*h}"); LG.add(("B", k))
    for c in range(4):
        E("s_waitcnt lgkmcnt(0)"); E("s_barrier")
        if c == 3:
            for a in range(4):
                E(f"buffer_load_dwordx4 {vr(176+4*a,4)}, v9, s[4:7], s21 offen offset:{32*a}"); VM.add("S")
                E(f"buffer_load_dwordx4 {vr(192+4*a,4)}, v9, s[4:7], s22 offen offset:{32*a}"); VM.add("S")
        for k in range(8*c, 8*c+3): rdB(k)
        for k in range(8*c, 8*c+8):
            if k+3 < 8*c+8: rdB(k+3)
            E(f"s_waitcnt vmcnt({VM.need(('A', k))}) lgkmcnt({LG.need(('B', k))})")
            for th in range(2):
                cc = "0" if k == 0 else vr(16+16*th, 16)
                E(f"v_mfma_f32_32x32x16_bf16 {vr(16+16*th,16)}, {vr(48+4*k,4)}, {vr(BF+8*(k%4)+4*th,4)}, {cc}")
            if k < 28: w2ld(k); VM.add("W2")
            if k % 8 == 5 and c < 3: twr(2*c+2); twr(2*c+3)
    SW = VM.need("S")
    E("s_barrier")
    E("v_and_b32 v11, 31, v2"); E("v_lshlrev_b32 v11, 3, v11"); E("v_add_u32 v11, 0x10000, v11")
    E("ds_read_b64 v[12:13], v11"); E("ds_read_b64 v[14:15], v11 offset:256")
    E("s_mul_i32 s21, s16, 224"); E("s_lshl_b32 s22, s20, 1"); E("s_add_u32 s21, s21, s22"); E("s_lshl_b32 s21, s21, 10")
    E(f"s_add_u32 s21, s21, {hex(HP)}"); E(f"s_add_u32 s22, s21, {112*1024}")
    E(f"s_waitcnt vmcnt({SW}) lgkmcnt(0)"); E("s_nop 4")
    for th in range(2):
        a = 16+16*th
        for r in range(16): E(f"v_fma_f32 v{a+r}, -v{12+2*th}, v{176+r}, v{a+r}")
        for r in range(16): E(f"v_fma_f32 v{a+r}, v{a+r}, v{13+2*th}, v{192+r}")
        for r in range(16): E(f"v_max_f32 v{a+r}, 0, v{a+r}")
        for r in range(16): E(f"v_mul_f32 v{a+r}, v{a+r}, v{a+r}")
        for r in range(8): E(f"v_cvt_pk_bf16_f32 v{160+8*th+r}, v{a+2*r}, v{a+2*r+1}")
        E(f"buffer_store_dwordx4 {vr(160+8*th,4)}, v8, s[4:7], s{21+th} offen sc1")
        E(f"buffer_store_dwordx4 {vr(164+8*th,4)}, v8, s[4:7], s{21+th} offen offset:1024 sc1")
    LBL("F_P2")
    E("s_waitcnt vmcnt(0)"); E("s_barrier"); TS(2)
    E("v_mov_b32 v9, 0"); E("v_mov_b32 v10, 1")
    E("s_lshl_b32 s21, s16, 10"); E(f"s_add_u32 s21, s21, {hex(FLG)}")
    E("s_cmp_lg_u32 s18, 0"); E("s_cbranch_scc1 F_NOPUB")
    E("s_lshl_b32 s22, s17, 7"); E("s_add_u32 s22, s22, s21")
    E("s_mov_b64 exec, 1")
    E("buffer_store_dword v10, v9, s[4:7], s22 offen sc1")
    E("s_mov_b64 exec, -1")
    LBL("F_NOPUB")
    E("s_lshl_b32 s22, s18, 7"); E("s_add_u32 s22, s22, s21")
    E("s_mov_b32 s38, 0x40000")
    LBL("F_POLL")
    E("buffer_load_dword v11, v9, s[4:7], s22 offen sc1")
    E("s_waitcnt vmcnt(0)")
    E("v_readfirstlane_b32 s23, v11")
    E("s_cmp_eq_u32 s23, 1"); E("s_cbranch_scc1 F_GO")
    E("s_sleep 2"); E("s_sub_u32 s38, s38, 1"); E("s_cmp_lg_u32 s38, 0"); E("s_cbranch_scc1 F_POLL")
    LBL("F_GO"); TS(3)
    ring = [16, 24, 32, 40, 160, 168, 240] + ([] if DBG else [248])
    RD = len(ring)
    def hld(k):
        for th in range(2): E(f"buffer_load_dwordx4 {vr(ring[k%RD]+4*th,4)}, v8, s[4:7], s{36+th} offen offset:{1024*(k&3)} sc1")
        if k & 3 == 3: E("s_add_u32 s36, s36, 4096"); E("s_add_u32 s37, s37, 4096")
    for k in range(RD): hld(k)
    E("s_lshr_b32 s24, s18, 2"); E("s_bfe_u32 s25, s18, 0x10001"); E("s_and_b32 s30, s18, 1")
    E("s_lshl_b32 s26, s17, 1"); E("s_add_u32 s26, s26, s24"); E("s_lshl_b32 s26, s26, 1"); E("s_add_u32 s26, s26, s30"); E("s_lshl_b32 s26, s26, 4")
    E("s_lshl_b32 s27, s16, 1"); E("s_add_u32 s27, s27, s25"); E("s_lshl_b32 s27, s27, 5")
    E("v_lshrrev_b32 v4, 5, v2"); E("v_and_b32 v5, 31, v2")
    E("v_lshlrev_b32 v6, 14, v4"); E("v_lshl_add_u32 v6, v5, 1, v6")
    E("s_lshl_b32 s28, s26, 12"); E("s_lshl_b32 s29, s27, 1"); E("s_add_u32 s28, s28, s29"); E(f"s_add_u32 s28, s28, {hex(X1T)}")
    E("v_lshlrev_b32 v7, 4, v4"); E("s_lshl_b32 s29, s26, 2"); E(f"s_add_u32 s29, s29, {MOD+5*512*4}")
    E("v_lshlrev_b32 v3, 3, v4"); E("s_lshl_b32 s31, s26, 1")
    issued = RD; extra = 0
    for k in range(14):
        younger = 2*(issued-1-k) + extra
        E(f"s_waitcnt vmcnt({younger})")
        for dt in range(2):
            for th in range(2):
                a = 176+16*(2*dt+th)
                E(f"v_mfma_f32_32x32x16_bf16 {vr(a,16)}, {vr(48+8*k+4*dt,4)}, {vr(ring[k%RD]+4*th,4)}, " + ("0" if k == 0 else vr(a, 16)))
        if issued < 14: hld(issued); issued += 1
        elif extra == 0:
            for r in range(8):
                E(f"buffer_load_ushort v{48+r}, v6, s[4:7], s28 offen"); E(f"s_add_u32 s28, s28, {4096 if (r & 3) != 3 else 5*4096}")
            for a in range(2): E(f"buffer_load_dwordx4 {vr(56+4*a,4)}, v7, s[4:7], s29 offen offset:{32*a}")
            for a in range(2): E(f"buffer_load_dwordx2 {vr(64+2*a,2)}, v3, s[12:15], s31 offen offset:{16*a}")
            extra = 12
    TS(4)
    E("v_lshl_add_u32 v1, v1, 14, v8"); E("s_nop 7"); E("s_nop 3")
    for tl in range(4):
        for a in range(4): E(f"ds_write_b128 v1, {vr(176+16*tl+4*a,4)} offset:{4096*tl+1024*a}")
    E("s_lshl_b32 s28, s18, 11"); E("v_add_u32 v1, s28, v8"); E("v_add_u32 v9, 0x10000, v1")
    E("s_waitcnt lgkmcnt(0)"); E("s_barrier")
    for w in range(8):
        for a in range(2): E(f"ds_read_b128 {vr(80+8*w+4*a,4)}, v{1 if w < 4 else 9} offset:{16384*(w&3)+1024*a}")
    E("v_lshlrev_b32 v6, 10, v5"); E("v_lshl_add_u32 v6, v4, 3, v6")
    E("s_lshl_b32 s28, s27, 10"); E("s_lshl_b32 s29, s26, 1"); E("s_add_u32 s28, s28, s29")
    E("s_waitcnt vmcnt(0)")
    for r in range(8): lo(48+r, 48+r)
    for a in range(4): lo(68+2*a, 64+a); hi(69+2*a, 64+a)
    E("s_waitcnt lgkmcnt(0)")
    for st in (32, 16, 8):
        for r in range(st): E(f"v_add_f32 v{80+r}, v{80+r}, v{80+st+r}")
    def rn8(b):
        for e in range(0, 8, 2):
            E(f"v_cvt_pk_bf16_f32 v24, v{b+e}, v{b+1+e}"); lo(b+e, 24); hi(b+1+e, 24)
    rn8(80)
    for r in range(8): E(f"v_add_f32 v{80+r}, v{80+r}, v{68+r}")
    rn8(80)
    for r in range(8): E(f"v_mul_f32 v{80+r}, v{80+r}, v{56+r}")
    rn8(80)
    for r in range(8): E(f"v_add_f32 v{80+r}, v{80+r}, v{48+r}")
    for e in range(4): E(f"v_cvt_pk_bf16_f32 v{24+e}, v{80+2*e}, v{81+2*e}")
    for a in range(2): E(f"buffer_store_dwordx2 {vr(24+2*a,2)}, v6, s[8:11], s28 offen offset:{16*a}")
    TS(7)
    LBL("F_END")
    E("s_endpgm")
    LBL("F_ST")
    VM.l = []; LG.l = []
    E("s_setprio 2")
    for i in range(8): tld(i)
    for k in range(28): w2ld(k); VM.add("W2")
    E("v_lshrrev_b32 v10, 2, v2"); E("v_lshlrev_b32 v10, 6, v10"); E("v_and_b32 v11, 3, v2"); E("v_lshl_add_u32 v10, v11, 3, v10")
    for i in range(4): E(f"v_mov_b32 v{12+i}, 0x3f803f80")
    twr(0); twr(1)
    SR = [160, 208, 224]
    def rdS(k):
        b = SR[k % 3]
        for tg in range(4):
            for h in range(2):
                E(f"ds_read_b64_tr_b16 {vr(b+4*tg+2*h,2)}, v10 offset:{32768*(tg>>1)+32*(tg&1)+2048*k+1024*h}"); LG.add(("B", k))
    for c in range(4):
        E("s_waitcnt lgkmcnt(0)"); E("s_barrier")
        rdS(4*c); rdS(4*c+1)
        for k in range(4*c, 4*c+4):
            E(f"s_waitcnt lgkmcnt({LG.need(('B', k))})")
            if k+2 < 4*c+4: rdS(k+2)
            for tg in range(4):
                f = vr(SR[k % 3]+4*tg, 4)
                E(f"v_mfma_f32_16x16x32_bf16 {vr(16+4*tg,4)}, {f}, {f}, " + ("0" if k == 0 else vr(16+4*tg, 4)))
                E(f"v_mfma_f32_16x16x32_bf16 {vr(32+4*tg,4)}, v[12:15], {f}, " + ("0" if k == 0 else vr(32+4*tg, 4)))
            if k % 4 == 2 and c < 3: twr(2*c+2); twr(2*c+3)
    E("v_and_b32 v11, 3, v2")
    E("v_cmp_eq_u32 s[24:25], 1, v11"); E("v_cmp_eq_u32 s[26:27], 2, v11"); E("v_cmp_eq_u32 s[28:29], 3, v11")
    E("v_bfe_u32 v3, v2, 2, 2"); E("v_lshrrev_b32 v4, 4, v2"); E("v_cmp_eq_u32 vcc, v3, v4")
    E("v_and_b32 v5, 15, v2"); E("v_lshlrev_b32 v5, 3, v5"); E("v_add_u32 v5, 0x10000, v5"); E("s_nop 7")
    for tg in range(4):
        q = 16+4*tg; m = 32+4*tg
        E(f"v_cndmask_b32 v{q}, v{q}, v{q+1}, s[24:25]"); E(f"v_cndmask_b32 v{q}, v{q}, v{q+2}, s[26:27]"); E(f"v_cndmask_b32 v{q}, v{q}, v{q+3}, s[28:29]")
        E(f"v_mul_f32 v{m}, 0x3b000000, v{m}"); E(f"v_mul_f32 v{q}, 0x3b000000, v{q}")
        E(f"v_fma_f32 v{q}, -v{m}, v{m}, v{q}"); E(f"v_max_f32 v{q}, 0, v{q}")
        rnd(q, q); rnd(m, m)
        E(f"v_add_f32 v{q}, 0x3727c5ac, v{q}"); rnd(q, q)
        E(f"v_sqrt_f32 v{q}, v{q}"); E("s_nop 0"); rnd(q, q)
        E(f"v_rcp_f32 v{m+1}, v{q}")
    E("s_and_saveexec_b64 s[30:31], vcc")
    for tg in range(4): E(f"ds_write_b64 v5, {vr(32+4*tg,2)} offset:{128*tg}")
    E("s_mov_b64 exec, s[30:31]")
    E("s_waitcnt lgkmcnt(0)"); TS(1); E("s_barrier")
    E("s_setprio 0"); E("s_branch F_P2")

KS = [("prep_kernel", 280, 256, 33792, 112, k_prep), ("conv_kernel", 568, 256, 8*CS+4608+9792, 140, k_conv),
      ("ffn_kernel", 256, 512, 131072, 256, k_ffn)]
def build(path):
    ref = open("adaLN_cond__ssm_conv_s4__dense_activation_squared_relu__prompt.s.ref").read().split("\n")
    hdr = [l for l in ref if l.startswith(";") and "@launch" not in l]
    for n, g, b, lds, vg, f in KS: hdr.append(f"; @launch kernel={n} grid=({g},1,1) block=({b},1,1) lds={lds}")
    L.clear()
    for i, (n, g, b, lds, vg, f) in enumerate(KS): KIDX[0] = i; TSV[0] = 252 if vg > 250 else vg; f()
    out = hdr + ['.amdgcn_target "amdgcn-amd-amdhsa--gfx950"', ".text"] + L + ['.section .rodata,"a"']
    for n, g, b, lds, vg, f in KS:
        if DBG and vg < 250: vg += 4
        out += [".p2align 6", f".amdhsa_kernel {n}", f"  .amdhsa_next_free_vgpr {vg}", "  .amdhsa_next_free_sgpr 64",
                f"  .amdhsa_accum_offset {vg}", "  .amdhsa_group_segment_fixed_size 0", "  .amdhsa_kernarg_size 152",
                "  .amdhsa_user_sgpr_count 2", "  .amdhsa_user_sgpr_kernarg_segment_ptr 1", "  .amdhsa_system_sgpr_workgroup_id_x 1", ".end_amdhsa_kernel"]
    open(path, "w").write("\n".join(out) + "\n")
if __name__ == "__main__":
    import sys
    build(sys.argv[1] if len(sys.argv) > 1 else "adaLN_cond__ssm_conv_s4__dense_activation_squared_relu__prompt.s")
```

```python
L = []
def E(s): L.append("    " + s)
def LBL(s): L.append(s + ":")
def C(s): L.append("    ; " + s)
MOD, S1, S2, XT, KG, X1T, W1P, W2P, HP = 0x0, 0x4000, 0x6000, 0x600000, 0x500000, 0x10000, 0x210000, 0x3D0000, 0x600000
WSB = 0x2000000
FLG = 0x8000
KPAR, KCH = 4160, 8320
def vr(a, n): return f"v[{a}:{a+n-1}]"
def srd(d, karg_off, nbytes):
    E(f"s_load_dwordx2 s[{d}:{d+1}], s[0:1], {karg_off}")
    E(f"s_mov_b32 s{d+2}, {hex(nbytes)}")
    E(f"s_mov_b32 s{d+3}, 0x00020000")
def head(name):
    L.append(f".globl {name}\n.p2align 8\n.type {name},@function\n{name}:")
import os
DBG = int(os.environ.get("DBG", "0"))
KIDX = [0]; TSV = [252]
def TS(slot):
    if not DBG: return
    E("s_memrealtime s[60:61]")
    a = TSV[0]; E(f"v_lshrrev_b32 v{a}, 6, v0"); E(f"v_lshlrev_b32 v{a}, 5, v{a}")
    E("s_lshl_b32 s62, s2, 8"); E(f"s_add_u32 s62, s62, {hex(0x1800000 + KIDX[0]*0x40000 + slot*4)}")
    E("s_waitcnt lgkmcnt(0)"); E(f"v_mov_b32 v{a+1}, s60")
    E(f"buffer_store_dword v{a+1}, v{a}, s[4:7], s62 offen")
def lo(d, s): E(f"v_lshlrev_b32 v{d}, 16, v{s}")
def hi(d, s): E(f"v_and_b32 v{d}, 0xffff0000, v{s}")
def rnd(d, s):
    E(f"v_cvt_pk_bf16_f32 v{d}, v{s}, v{s}"); hi(d, d)
def wavesum(regs):
    steps = ["row_shr:1 row_mask:0xf bank_mask:0xf bound_ctrl:0", "row_shr:2 row_mask:0xf bank_mask:0xf bound_ctrl:0",
             "row_shr:4 row_mask:0xf bank_mask:0xf bound_ctrl:0", "row_shr:8 row_mask:0xf bank_mask:0xf bound_ctrl:0",
             "row_bcast:15 row_mask:0xa bank_mask:0xf", "row_bcast:31 row_mask:0xc bank_mask:0xf"]
    E("s_nop 1")
    for st in steps:
        for r in regs: E(f"v_add_f32_dpp v{r}, v{r}, v{r} {st}")
        if len(regs) < 3: E("s_nop 1")
    E("s_nop 1")

def k_prep():
    head("prep_kernel")
    srd(4, 144, WSB)
    TS(0)
    E("s_cmp_lt_u32 s2, 96"); E("s_cbranch_scc1 P_MOD")
    E("s_cmp_lt_u32 s2, 224"); E("s_cbranch_scc1 P_LN")
    E("s_cmp_lt_u32 s2, 280"); E("s_cbranch_scc1 P_W2")
    E("s_endpgm")
    LBL("P_MOD")
    srd(8, 120, 512*3072*2); srd(12, 112, 1024)
    E("v_and_b32 v1, 3, v0"); E("v_lshrrev_b32 v2, 2, v0")
    E("v_mul_u32_u24 v3, 49152, v2"); E("v_lshl_add_u32 v3, v1, 4, v3")
    E("s_lshl_b32 s17, s2, 6")
    E("v_lshlrev_b32 v4, 4, v2")
    E("s_waitcnt lgkmcnt(0)")
    E("buffer_load_dwordx4 v[8:11], v4, s[12:15], 0 offen")
    for i in range(8):
        E(f"buffer_load_dwordx4 {vr(48+4*i,4)}, v3, s[8:11], s17 offen")
        E("s_add_u32 s17, s17, 6144")
    E("v_lshlrev_b32 v5, 7, v0"); E("v_mov_b32 v6, 0"); E(f"s_mov_b32 s18, {hex(FLG)}")
    E("s_waitcnt vmcnt(8)")
    for i in range(4): lo(16+2*i, 8+i); hi(17+2*i, 8+i)
    for i in range(8): E(f"v_mul_f32 v{32+i}, 0xbfb8aa3b, v{16+i}")
    for i in range(8): E(f"v_exp_f32 v{32+i}, v{32+i}")
    for i in range(8): E(f"v_add_f32 v{32+i}, 1.0, v{32+i}")
    for i in range(8): E(f"v_rcp_f32 v{32+i}, v{32+i}")
    for i in range(8): E(f"v_mul_f32 v{16+i}, v{16+i}, v{32+i}")
    for i in range(8): rnd(16+i, 16+i)
    for j in range(8): E(f"v_mov_b32 v{32+j}, 0")
    for i in range(8):
        E(f"s_waitcnt vmcnt({7-i})")
        for j in range(4): lo(40+2*j, 48+4*i+j); hi(41+2*j, 48+4*i+j)
        for j in range(8): E(f"v_fmac_f32 v{32+j}, v{40+j}, v{16+i}")
    E("s_cmp_lg_u32 s2, 0"); E("s_cbranch_scc1 P_NOZ")
    E("buffer_store_dword v6, v5, s[4:7], s18 offen")
    LBL("P_NOZ")
    E("v_lshlrev_b32 v5, 5, v0")
    E("ds_write_b128 v5, v[32:35]"); E("ds_write_b128 v5, v[36:39] offset:16")
    E("s_waitcnt lgkmcnt(0)"); E("s_barrier")
    E("v_and_b32 v6, 63, v0"); E("v_lshlrev_b32 v6, 2, v6")
    for i in range(32): E(f"ds_read_b32 v{48+i}, v6 offset:{256*i}")
    E("s_waitcnt lgkmcnt(0)")
    for st in (16, 8, 4, 2, 1):
        for i in range(st): E(f"v_add_f32 v{48+i}, v{48+i}, v{48+i+st}")
    E("v_mov_b32 v49, v48"); E("s_nop 1"); E("v_permlane32_swap_b32 v48, v49"); E("s_nop 1"); E("v_add_f32 v48, v48, v49")
    rnd(48, 48)
    E("s_lshl_b32 s17, s2, 7"); E("v_and_b32 v6, 127, v6")
    E(f"buffer_store_dword v48, v6, s[4:7], s17 offen")
    TS(7); E("s_endpgm")
    LBL("P_LN")
    srd(8, 0, 2048*512*2)
    E("s_sub_u32 s16, s2, 96")
    E("v_lshrrev_b32 v1, 6, v0"); E("v_and_b32 v2, 63, v0")
    E("v_lshlrev_b32 v3, 12, v1"); E("v_lshl_add_u32 v3, v2, 4, v3")
    E("s_lshl_b32 s17, s16, 14")
    E("s_waitcnt lgkmcnt(0)")
    for r in range(4): E(f"buffer_load_dwordx4 {vr(8+4*r,4)}, v3, s[8:11], s17 offen offset:{1024*r}")
    for r in range(4):
        E(f"s_waitcnt vmcnt({3-r})")
        for j in range(4): lo(32+8*r+2*j, 8+4*r+j); hi(33+8*r+2*j, 8+4*r+j)
        E(f"v_add_f32 v{24+r}, v{32+8*r}, v{33+8*r}")
        for j in range(2, 8): E(f"v_add_f32 v{24+r}, v{24+r}, v{32+8*r+j}")
    wavesum([24, 25, 26, 27])
    for r in range(4): E(f"v_readlane_b32 s{20+r}, v{24+r}, 63")
    E("s_nop 1")
    for r in range(4): E(f"v_mov_b32 v{24+r}, s{20+r}")
    for r in range(4): E(f"v_mul_f32 v{24+r}, 0x3b000000, v{24+r}")
    for r in range(4):
        E(f"v_mov_b32 v{28+r}, 0")
        for j in range(8):
            E(f"v_sub_f32 v64, v{32+8*r+j}, v{24+r}"); E(f"v_fmac_f32 v{28+r}, v64, v64")
    wavesum([28, 29, 30, 31])
    for r in range(4): E(f"v_readlane_b32 s{20+r}, v{28+r}, 63")
    E("s_nop 1")
    for r in range(4): E(f"v_mov_b32 v{28+r}, s{20+r}")
    for r in range(4): E(f"v_mul_f32 v{28+r}, 0x3b000000, v{28+r}")
    for r in range(4): rnd(28+r, 28+r); rnd(24+r, 24+r)
    for r in range(4): E(f"v_add_f32 v{28+r}, 0x3727c5ac, v{28+r}")
    for r in range(4): rnd(28+r, 28+r)
    for r in range(4): E(f"v_sqrt_f32 v{28+r}, v{28+r}")
    for r in range(4): rnd(28+r, 28+r)
    for r in range(4): E(f"v_rcp_f32 v{28+r}, v{28+r}")
    E("s_nop 0")
    for r in range(4):
        for j in range(0, 8, 2):
            a = 32+8*r+j
            E(f"v_sub_f32 v64, v{a}, v{24+r}"); E(f"v_sub_f32 v65, v{a+1}, v{24+r}")
            E("v_cvt_pk_bf16_f32 v66, v64, v65"); lo(64, 66); hi(65, 66)
            E(f"v_mul_f32 v64, v64, v{28+r}"); E(f"v_mul_f32 v65, v65, v{28+r}")
            E(f"v_cvt_pk_bf16_f32 v{72+4*j+r}, v64, v{a}")
            E(f"v_cvt_pk_bf16_f32 v{72+4*(j+1)+r}, v65, v{a+1}")
    E("v_mul_u32_u24 v4, 528, v2"); E("v_lshl_add_u32 v4, v1, 4, v4")
    for j in range(8): E(f"ds_write_b128 v4, {vr(72+4*j,4)} offset:{64*j}")
    E("s_waitcnt lgkmcnt(0)"); E("s_barrier")
    E("v_and_b32 v5, 3, v0"); E("v_lshrrev_b32 v6, 2, v0")
    E("v_lshrrev_b32 v7, 3, v6"); E("v_mul_u32_u24 v7, 528, v7")
    E("v_and_b32 v4, 7, v6"); E("v_lshl_add_u32 v7, v4, 6, v7"); E("v_lshl_add_u32 v7, v5, 4, v7")
    for i in range(8): E(f"ds_read_b128 {vr(72+4*i,4)}, v7 offset:{528*8*i}")
    E("v_lshlrev_b32 v6, 13, v6"); E("v_lshl_add_u32 v6, v5, 4, v6")
    E("s_lshl_b32 s17, s16, 6"); E(f"s_add_u32 s17, s17, {hex(XT)}")
    for i in range(8):
        E(f"s_waitcnt lgkmcnt({7-i})")
        E(f"buffer_store_dwordx4 {vr(72+4*i,4)}, v6, s[4:7], s17 offen")
        E("s_add_u32 s17, s17, 0x80000")
    TS(7); E("s_endpgm")
    LBL("P_W2")
    srd(8, 96, 1792*512*2)
    E("s_sub_u32 s16, s2, 224")
    E("v_lshrrev_b32 v1, 6, v0"); E("v_and_b32 v2, 63, v0")
    E("v_lshrrev_b32 v3, 1, v1"); E("v_and_b32 v4, 1, v1")
    E("v_lshlrev_b32 v5, 14, v3"); E("v_lshl_add_u32 v5, v4, 12, v5"); E("v_lshl_add_u32 v5, v2, 4, v5")
    E("s_lshl_b32 s17, s16, 15"); E("s_add_u32 s18, s17, 8192")
    E("s_mov_b32 s20, 0x05040100"); E("s_mov_b32 s21, 0x07060302")
    E("s_waitcnt lgkmcnt(0)")
    for e in range(8): E(f"buffer_load_dwordx4 {vr(8+4*e,4)}, v5, s[8:11], s{17+(e>>2)} offen offset:{1024*(e&3)}")
    E("v_lshrrev_b32 v6, 2, v2"); E("v_mul_u32_u24 v6, 112, v6"); E("v_add_u32 v6, v6, v3")
    E("v_lshlrev_b32 v6, 10, v6"); E("v_and_b32 v7, 3, v2"); E("v_lshl_add_u32 v6, v7, 7, v6"); E("v_lshl_add_u32 v6, v4, 9, v6")
    E("s_lshl_b32 s17, s16, 11"); E(f"s_add_u32 s17, s17, {hex(W2P)}")
    E("s_waitcnt vmcnt(0)")
    for dd in range(8):
        for ep in range(4):
            E(f"v_perm_b32 v{40+4*dd+ep}, v{8+4*(2*ep+1)+(dd>>1)}, v{8+4*(2*ep)+(dd>>1)}, s{20+(dd&1)}")
        E(f"buffer_store_dwordx4 {vr(40+4*dd,4)}, v6, s[4:7], s17 offen offset:{16*dd}")
    TS(7); E("s_endpgm")

class Cnt:
    def __init__(s, name, mx): s.n = name; s.l = []; s.mx = mx
    def add(s, tag): s.l.append(tag)
    def need(s, tag):
        i = max(k for k, t in enumerate(s.l) if t == tag)
        return min(s.mx, len(s.l)-1-i)
```

```python
from gen2 import *
def k_ffn():
    head("ffn_kernel")
    srd(4, 144, WSB); srd(8, 128, 2048*512*2); srd(12, 104, 1024)
    E("s_cmp_ge_u32 s2, 256"); E("s_cbranch_scc1 F_END")
    E("s_and_b32 s16, s2, 7"); E("s_lshl_b32 s16, s16, 2"); E("s_bfe_u32 s17, s2, 0x20003"); E("s_add_u32 s16, s16, s17")
    E("s_lshr_b32 s17, s2, 5")
    E("v_lshrrev_b32 v1, 6, v0"); E("v_and_b32 v2, 63, v0"); E("v_lshlrev_b32 v8, 4, v2")
    E("v_readfirstlane_b32 s18, v1")
    E("v_and_b32 v3, 7, v0"); E("v_lshrrev_b32 v4, 3, v0")
    E("v_lshlrev_b32 v5, 12, v4"); E("v_lshl_add_u32 v5, v3, 4, v5")
    E("s_lshl_b32 s19, s16, 7"); E(f"s_add_u32 s19, s19, {hex(X1T)}")
    E("s_mul_i32 s32, s18, 14"); E("s_mul_i32 s33, s17, 224"); E("s_add_u32 s33, s33, s32"); E("s_lshl_b32 s33, s33, 10")
    E(f"s_add_u32 s34, s33, {hex(W2P)}"); E(f"s_add_u32 s35, s34, {112*1024}")
    E("s_mul_i32 s33, s16, 224"); E("s_add_u32 s33, s33, s32"); E("s_lshl_b32 s33, s33, 10")
    E(f"s_add_u32 s36, s33, {hex(HP)}"); E(f"s_add_u32 s37, s36, {112*1024}")
    E("s_waitcnt lgkmcnt(0)"); TS(0)
    E("v_lshlrev_b32 v6, 6, v4"); E("v_and_b32 v7, 3, v3"); E("v_lshl_add_u32 v6, v7, 4, v6")
    E("v_lshrrev_b32 v7, 2, v3"); E("v_lshl_add_u32 v6, v7, 15, v6")
    E("s_mul_i32 s20, s17, 7"); E("s_add_u32 s20, s20, s18")
    def w2ld(k):
        ks, dt = k >> 1, k & 1
        E(f"buffer_load_dwordx4 {vr(48+4*k,4)}, v8, s[4:7], s{34+dt} offen offset:{1024*(ks&3)}")
        if dt == 1 and ks & 3 == 3: E("s_add_u32 s34, s34, 4096"); E("s_add_u32 s35, s35, 4096")
    E("s_cmp_eq_u32 s18, 7"); E("s_cbranch_scc1 F_ST")
    E("s_lshl_b32 s21, s20, 15"); E(f"s_add_u32 s21, s21, {hex(W1P)}")
    VM = Cnt("vm", 63); LG = Cnt("lg", 15)
    def tld(i):
        E(f"buffer_load_dwordx4 {vr(176+4*i,4)}, v5, s[4:7], s19 offen"); E("s_add_u32 s19, s19, 0x40000"); VM.add(("T", i))
    def twr(i):
        E(f"s_waitcnt vmcnt({VM.need(('T', i))})"); E(f"ds_write_b128 v6, {vr(176+4*i,4)} offset:{4096*i}"); LG.add(("W", i))
    for c in range(4):
        tld(2*c); tld(2*c+1)
        for k in range(8*c, 8*c+8):
            E(f"buffer_load_dwordx4 {vr(48+4*k,4)}, v8, s[4:7], s21 offen offset:{1024*(k&3)}"); VM.add(("A", k))
            if k & 3 == 3: E("s_add_u32 s21, s21, 4096")
    E("v_lshrrev_b32 v9, 5, v2"); E("v_lshlrev_b32 v9, 4, v9")
    E("s_lshl_b32 s21, s20, 7"); E(f"s_add_u32 s22, s21, {hex(S2)}"); E(f"s_add_u32 s21, s21, {hex(S1)}")
    E("v_lshrrev_b32 v10, 5, v2"); E("v_lshlrev_b32 v10, 9, v10"); E("v_bfe_u32 v11, v2, 2, 2"); E("v_lshl_add_u32 v10, v11, 6, v10")
    E("v_bfe_u32 v11, v2, 4, 1"); E("v_lshl_add_u32 v10, v11, 5, v10"); E("v_and_b32 v11, 3, v2"); E("v_lshl_add_u32 v10, v11, 3, v10")
    twr(0); twr(1)
    BF = 208
    def rdB(k):
        b = BF + 8*(k % 4)
        for th in range(2):
            for h in range(2):
                E(f"ds_read_b64_tr_b16 {vr(b+4*th+2*h,2)}, v10 offset:{32768*th+1024*k+256*h}"); LG.add(("B", k))
    for c in range(4):
        E("s_waitcnt lgkmcnt(0)"); E("s_barrier")
        if c == 3:
            for a in range(4):
                E(f"buffer_load_dwordx4 {vr(176+4*a,4)}, v9, s[4:7], s21 offen offset:{32*a}"); VM.add("S")
                E(f"buffer_load_dwordx4 {vr(192+4*a,4)}, v9, s[4:7], s22 offen offset:{32*a}"); VM.add("S")
        for k in range(8*c, 8*c+3): rdB(k)
        for k in range(8*c, 8*c+8):
            if k+3 < 8*c+8: rdB(k+3)
            E(f"s_waitcnt vmcnt({VM.need(('A', k))}) lgkmcnt({LG.need(('B', k))})")
            for th in range(2):
                cc = "0" if k == 0 else vr(16+16*th, 16)
                E(f"v_mfma_f32_32x32x16_bf16 {vr(16+16*th,16)}, {vr(48+4*k,4)}, {vr(BF+8*(k%4)+4*th,4)}, {cc}")
            if 24 <= k < 31:
                for kk in (2*(k-24), 2*(k-24)+1): w2ld(kk); VM.add("W2")
            if k % 8 == 5 and c < 3: twr(2*c+2); twr(2*c+3)
    SW = VM.need("S")
    E("s_barrier")
    E("v_and_b32 v11, 31, v2"); E("v_lshlrev_b32 v11, 3, v11"); E("v_add_u32 v11, 0x10000, v11")
    E("ds_read_b64 v[12:13], v11"); E("ds_read_b64 v[14:15], v11 offset:256")
    E("s_mul_i32 s21, s16, 224"); E("s_lshl_b32 s22, s20, 1"); E("s_add_u32 s21, s21, s22"); E("s_lshl_b32 s21, s21, 10")
    E(f"s_add_u32 s21, s21, {hex(HP)}"); E(f"s_add_u32 s22, s21, {112*1024}")
    E(f"s_waitcnt vmcnt({SW}) lgkmcnt(0)"); E("s_nop 4")
    for th in range(2):
        a = 16+16*th
        for r in range(16): E(f"v_fma_f32 v{a+r}, -v{12+2*th}, v{176+r}, v{a+r}")
        for r in range(16): E(f"v_fma_f32 v{a+r}, v{a+r}, v{13+2*th}, v{192+r}")
        for r in range(16): E(f"v_max_f32 v{a+r}, 0, v{a+r}")
        for r in range(16): E(f"v_mul_f32 v{a+r}, v{a+r}, v{a+r}")
        for r in range(8): E(f"v_cvt_pk_bf16_f32 v{160+8*th+r}, v{a+2*r}, v{a+2*r+1}")
        E(f"buffer_store_dwordx4 {vr(160+8*th,4)}, v8, s[4:7], s{21+th} offen sc1")
        E(f"buffer_store_dwordx4 {vr(164+8*th,4)}, v8, s[4:7], s{21+th} offen offset:1024 sc1")
    for kk in range(14, 28): w2ld(kk)
    E("s_waitcnt vmcnt(14)"); E("s_barrier"); TS(2)
    LBL("F_P2")
    E("s_barrier")
    LBL("F_GO"); TS(3)
    ring = [16, 24, 32, 40, 160, 168, 240] + ([] if DBG else [248])
    RD = len(ring)
    def hld(k):
        for th in range(2): E(f"buffer_load_dwordx4 {vr(ring[k%RD]+4*th,4)}, v8, s[4:7], s{36+th} offen offset:{1024*(k&3)} sc1")
        if k & 3 == 3: E("s_add_u32 s36, s36, 4096"); E("s_add_u32 s37, s37, 4096")
    for k in range(RD): hld(k)
    E("s_lshr_b32 s24, s18, 2"); E("s_bfe_u32 s25, s18, 0x10001"); E("s_and_b32 s30, s18, 1")
    E("s_lshl_b32 s26, s17, 1"); E("s_add_u32 s26, s26, s24"); E("s_lshl_b32 s26, s26, 1"); E("s_add_u32 s26, s26, s30"); E("s_lshl_b32 s26, s26, 4")
    E("s_lshl_b32 s27, s16, 1"); E("s_add_u32 s27, s27, s25"); E("s_lshl_b32 s27, s27, 5")
    E("v_lshrrev_b32 v4, 5, v2"); E("v_and_b32 v5, 31, v2")
    E("v_lshlrev_b32 v6, 14, v4"); E("v_lshl_add_u32 v6, v5, 1, v6")
    E("s_lshl_b32 s28, s26, 12"); E("s_lshl_b32 s29, s27, 1"); E("s_add_u32 s28, s28, s29"); E(f"s_add_u32 s28, s28, {hex(X1T)}")
    E("v_lshlrev_b32 v7, 4, v4"); E("s_lshl_b32 s29, s26, 2"); E(f"s_add_u32 s29, s29, {MOD+5*512*4}")
    E("v_lshlrev_b32 v3, 3, v4"); E("s_lshl_b32 s31, s26, 1")
    issued = RD; extra = 0
    for k in range(14):
        younger = 2*(issued-1-k) + extra
        E(f"s_waitcnt vmcnt({younger})")
        for dt in range(2):
            for th in range(2):
                a = 176+16*(2*dt+th)
                E(f"v_mfma_f32_32x32x16_bf16 {vr(a,16)}, {vr(48+8*k+4*dt,4)}, {vr(ring[k%RD]+4*th,4)}, " + ("0" if k == 0 else vr(a, 16)))
        if issued < 14: hld(issued); issued += 1
        elif extra == 0:
            for r in range(8):
                E(f"buffer_load_ushort v{48+r}, v6, s[4:7], s28 offen"); E(f"s_add_u32 s28, s28, {4096 if (r & 3) != 3 else 5*4096}")
            for a in range(2): E(f"buffer_load_dwordx4 {vr(56+4*a,4)}, v7, s[4:7], s29 offen offset:{32*a}")
            for a in range(2): E(f"buffer_load_dwordx2 {vr(64+2*a,2)}, v3, s[12:15], s31 offen offset:{16*a}")
            extra = 12
    TS(4)
    E("v_lshl_add_u32 v1, v1, 14, v8"); E("s_nop 7"); E("s_nop 3")
    for tl in range(4):
        for a in range(4): E(f"ds_write_b128 v1, {vr(176+16*tl+4*a,4)} offset:{4096*tl+1024*a}")
    E("s_lshl_b32 s28, s18, 11"); E("v_add_u32 v1, s28, v8"); E("v_add_u32 v9, 0x10000, v1")
    E("s_waitcnt lgkmcnt(0)"); E("s_barrier")
    for w in range(8):
        for a in range(2): E(f"ds_read_b128 {vr(80+8*w+4*a,4)}, v{1 if w < 4 else 9} offset:{16384*(w&3)+1024*a}")
    E("v_lshlrev_b32 v6, 10, v5"); E("v_lshl_add_u32 v6, v4, 3, v6")
    E("s_lshl_b32 s28, s27, 10"); E("s_lshl_b32 s29, s26, 1"); E("s_add_u32 s28, s28, s29")
    E("s_waitcnt vmcnt(0)")
    for r in range(8): lo(48+r, 48+r)
    for a in range(4): lo(68+2*a, 64+a); hi(69+2*a, 64+a)
    E("s_waitcnt lgkmcnt(0)")
    for st in (32, 16, 8):
        for r in range(st): E(f"v_add_f32 v{80+r}, v{80+r}, v{80+st+r}")
    def rn8(b):
        for e in range(0, 8, 2):
            E(f"v_cvt_pk_bf16_f32 v24, v{b+e}, v{b+1+e}"); lo(b+e, 24); hi(b+1+e, 24)
    rn8(80)
    for r in range(8): E(f"v_add_f32 v{80+r}, v{80+r}, v{68+r}")
    rn8(80)
    for r in range(8): E(f"v_mul_f32 v{80+r}, v{80+r}, v{56+r}")
    rn8(80)
    for r in range(8): E(f"v_add_f32 v{80+r}, v{80+r}, v{48+r}")
    for e in range(4): E(f"v_cvt_pk_bf16_f32 v{24+e}, v{80+2*e}, v{81+2*e}")
    for a in range(2): E(f"buffer_store_dwordx2 {vr(24+2*a,2)}, v6, s[8:11], s28 offen offset:{16*a}")
    TS(7)
    LBL("F_END")
    E("s_endpgm")
    LBL("F_ST")
    VM.l = []; LG.l = []
    E("s_setprio 2")
    for i in range(8): tld(i)
    for k in range(28): w2ld(k); VM.add("W2")
    E("v_lshrrev_b32 v10, 2, v2"); E("v_lshlrev_b32 v10, 6, v10"); E("v_and_b32 v11, 3, v2"); E("v_lshl_add_u32 v10, v11, 3, v10")
    for i in range(4): E(f"v_mov_b32 v{12+i}, 0x3f803f80")
    twr(0); twr(1)
    SR = [160, 208, 224]
    def rdS(k):
        b = SR[k % 3]
        for tg in range(4):
            for h in range(2):
                E(f"ds_read_b64_tr_b16 {vr(b+4*tg+2*h,2)}, v10 offset:{32768*(tg>>1)+32*(tg&1)+2048*k+1024*h}"); LG.add(("B", k))
    for c in range(4):
        E("s_waitcnt lgkmcnt(0)"); E("s_barrier")
        rdS(4*c); rdS(4*c+1)
        for k in range(4*c, 4*c+4):
            E(f"s_waitcnt lgkmcnt({LG.need(('B', k))})")
            if k+2 < 4*c+4: rdS(k+2)
            for tg in range(4):
                f = vr(SR[k % 3]+4*tg, 4)
                E(f"v_mfma_f32_16x16x32_bf16 {vr(16+4*tg,4)}, {f}, {f}, " + ("0" if k == 0 else vr(16+4*tg, 4)))
                E(f"v_mfma_f32_16x16x32_bf16 {vr(32+4*tg,4)}, v[12:15], {f}, " + ("0" if k == 0 else vr(32+4*tg, 4)))
            if k % 4 == 2 and c < 3: twr(2*c+2); twr(2*c+3)
    E("v_and_b32 v11, 3, v2")
    E("v_cmp_eq_u32 s[24:25], 1, v11"); E("v_cmp_eq_u32 s[26:27], 2, v11"); E("v_cmp_eq_u32 s[28:29], 3, v11")
    E("v_bfe_u32 v3, v2, 2, 2"); E("v_lshrrev_b32 v4, 4, v2"); E("v_cmp_eq_u32 vcc, v3, v4")
    E("v_and_b32 v5, 15, v2"); E("v_lshlrev_b32 v5, 3, v5"); E("v_add_u32 v5, 0x10000, v5"); E("s_nop 7")
    for tg in range(4):
        q = 16+4*tg; m = 32+4*tg
        E(f"v_cndmask_b32 v{q}, v{q}, v{q+1}, s[24:25]"); E(f"v_cndmask_b32 v{q}, v{q}, v{q+2}, s[26:27]"); E(f"v_cndmask_b32 v{q}, v{q}, v{q+3}, s[28:29]")
        E(f"v_mul_f32 v{m}, 0x3b000000, v{m}"); E(f"v_mul_f32 v{q}, 0x3b000000, v{q}")
        E(f"v_fma_f32 v{q}, -v{m}, v{m}, v{q}"); E(f"v_max_f32 v{q}, 0, v{q}")
        rnd(q, q); rnd(m, m)
        E(f"v_add_f32 v{q}, 0x3727c5ac, v{q}"); rnd(q, q)
        E(f"v_sqrt_f32 v{q}, v{q}"); E("s_nop 0"); rnd(q, q)
        E(f"v_rcp_f32 v{m+1}, v{q}")
    E("s_and_saveexec_b64 s[30:31], vcc")
    for tg in range(4): E(f"ds_write_b64 v5, {vr(32+4*tg,2)} offset:{128*tg}")
    E("s_mov_b64 exec, s[30:31]")
    E("s_waitcnt lgkmcnt(0)"); TS(1); E("s_barrier")
    E("v_and_b32 v9, 7, v2"); E("v_lshlrev_b32 v9, 7, v9"); E("v_mov_b32 v10, 1"); E("v_mov_b32 v12, 0")
    E("s_lshl_b32 s21, s16, 10"); E(f"s_add_u32 s21, s21, {hex(FLG)}")
    E("s_lshl_b32 s22, s17, 7"); E("s_add_u32 s22, s22, s21")
    E("s_mov_b32 s38, 0x40000")
    E("s_barrier")
    E("s_mov_b64 exec, 1")
    E("buffer_store_dword v10, v12, s[4:7], s22 offen sc1")
    E("s_mov_b64 exec, -1")
    LBL("F_POLL")
    E("buffer_load_dword v11, v9, s[4:7], s21 offen sc1")
    E("s_waitcnt vmcnt(0)")
    E("v_cmp_ne_u32 vcc, 1, v11")
    E("s_cbranch_vccz F_PD")
    E("s_sleep 1"); E("s_sub_u32 s38, s38, 1"); E("s_cmp_lg_u32 s38, 0"); E("s_cbranch_scc1 F_POLL")
    LBL("F_PD")
    E("s_setprio 0"); E("s_branch F_P2")

KS = [("prep_kernel", 280, 256, 33792, 112, k_prep), ("conv_kernel", 568, 256, 8*CS+4608+9792, 140, k_conv),
      ("ffn_kernel", 256, 512, 131072, 256, k_ffn)]
def build(path):
    ref = open("adaLN_cond__ssm_conv_s4__dense_activation_squared_relu__prompt.s.ref").read().split("\n")
    hdr = [l for l in ref if l.startswith(";") and "@launch" not in l]
    for n, g, b, lds, vg, f in KS: hdr.append(f"; @launch kernel={n} grid=({g},1,1) block=({b},1,1) lds={lds}")
    L.clear()
    for i, (n, g, b, lds, vg, f) in enumerate(KS): KIDX[0] = i; TSV[0] = 252 if vg > 250 else vg; f()
    out = hdr + ['.amdgcn_target "amdgcn-amd-amdhsa--gfx950"', ".text"] + L + ['.section .rodata,"a"']
    for n, g, b, lds, vg, f in KS:
        if DBG and vg < 250: vg += 4
        out += [".p2align 6", f".amdhsa_kernel {n}", f"  .amdhsa_next_free_vgpr {vg}", "  .amdhsa_next_free_sgpr 64",
                f"  .amdhsa_accum_offset {vg}", "  .amdhsa_group_segment_fixed_size 0", "  .amdhsa_kernarg_size 152",
                "  .amdhsa_user_sgpr_count 2", "  .amdhsa_user_sgpr_kernarg_segment_ptr 1", "  .amdhsa_system_sgpr_workgroup_id_x 1", ".end_amdhsa_kernel"]
    open(path, "w").write("\n".join(out) + "\n")
if __name__ == "__main__":
    import sys
    build(sys.argv[1] if len(sys.argv) > 1 else "adaLN_cond__ssm_conv_s4__dense_activation_squared_relu__prompt.s")
```

```python
L = []
def E(s): L.append("    " + s)
def LBL(s): L.append(s + ":")
def C(s): L.append("    ; " + s)
MOD, S1, S2, XT, KG, X1T, W1P, W2P, HP = 0x0, 0x4000, 0x6000, 0x600000, 0x500000, 0x10000, 0x210000, 0x3D0000, 0x600000
WSB = 0x2000000
FLG = 0x8000
KPAR, KCH = 4160, 8320
def vr(a, n): return f"v[{a}:{a+n-1}]"
def srd(d, karg_off, nbytes):
    E(f"s_load_dwordx2 s[{d}:{d+1}], s[0:1], {karg_off}")
    E(f"s_mov_b32 s{d+2}, {hex(nbytes)}")
    E(f"s_mov_b32 s{d+3}, 0x00020000")
def head(name):
    L.append(f".globl {name}\n.p2align 8\n.type {name},@function\n{name}:")
import os
DBG = int(os.environ.get("DBG", "0"))
KIDX = [0]; TSV = [252]
def TS(slot):
    if not DBG: return
    E("s_memrealtime s[60:61]")
    a = TSV[0]; E(f"v_lshrrev_b32 v{a}, 6, v0"); E(f"v_lshlrev_b32 v{a}, 5, v{a}")
    E("s_lshl_b32 s62, s2, 8"); E(f"s_add_u32 s62, s62, {hex(0x1800000 + KIDX[0]*0x40000 + slot*4)}")
    E("s_waitcnt lgkmcnt(0)"); E(f"v_mov_b32 v{a+1}, s60")
    E(f"buffer_store_dword v{a+1}, v{a}, s[4:7], s62 offen")
def lo(d, s): E(f"v_lshlrev_b32 v{d}, 16, v{s}")
def hi(d, s): E(f"v_and_b32 v{d}, 0xffff0000, v{s}")
def rnd(d, s):
    E(f"v_cvt_pk_bf16_f32 v{d}, v{s}, v{s}"); hi(d, d)
def wavesum(regs):
    steps = ["row_shr:1 row_mask:0xf bank_mask:0xf bound_ctrl:0", "row_shr:2 row_mask:0xf bank_mask:0xf bound_ctrl:0",
             "row_shr:4 row_mask:0xf bank_mask:0xf bound_ctrl:0", "row_shr:8 row_mask:0xf bank_mask:0xf bound_ctrl:0",
             "row_bcast:15 row_mask:0xa bank_mask:0xf", "row_bcast:31 row_mask:0xc bank_mask:0xf"]
    E("s_nop 1")
    for st in steps:
        for r in regs: E(f"v_add_f32_dpp v{r}, v{r}, v{r} {st}")
        if len(regs) < 3: E("s_nop 1")
    E("s_nop 1")

def trans_store(w1):
    E("v_lshrrev_b32 v56, 6, v0"); E("v_and_b32 v57, 63, v0")
    E("v_mul_u32_u24 v58, 9216, v56"); E("v_lshrrev_b32 v59, 3, v57"); E("v_mul_u32_u24 v59, 144, v59"); E("v_add_u32 v58, v58, v59")
    E("v_and_b32 v59, 7, v57"); E("v_lshl_add_u32 v58, v59, 4, v58")
    E("s_waitcnt lgkmcnt(0)")
    for i in range(8): E(f"ds_read_b128 {vr(64+4*i,4)}, v58 offset:{1152*i}")
    if w1:
        E("v_lshlrev_b32 v59, 13, v56"); E("v_lshl_add_u32 v59, v57, 4, v59")
    else:
        E("v_lshrrev_b32 v59, 5, v57"); E("v_mul_u32_u24 v59, 114688, v59"); E("v_lshl_add_u32 v59, v56, 9, v59")
        E("v_and_b32 v57, 31, v57"); E("v_lshl_add_u32 v59, v57, 4, v59")
    for i in range(8):
        E(f"s_waitcnt lgkmcnt({7-i})")
        E(f"buffer_store_dwordx4 {vr(64+4*i,4)}, v59, s[4:7], s17 offen"); E(f"s_add_u32 s17, s17, {1024 if w1 else 229376}")

NM, NL, NP = 48, 128, 56
B_LN, B_PK, B_CV = NM, NM+NL, NM+NL+NP
def arrive(_):
    E("s_mov_b64 exec, 1"); E("v_mov_b32 v1, 0"); E("v_mov_b32 v2, 1"); E("v_mov_b32 v3, 1")
    E("buffer_atomic_add v2, v1, s[56:59], 0 offen sc0 sc1")
    E("s_waitcnt vmcnt(0)")
    E(f"v_cmp_eq_u32 vcc, {NM+NL-1}, v2")
    E("s_cbranch_vccz P_END")
    E("buffer_store_dword v3, v1, s[56:59], 0 offen offset:128 sc1")
def poll(lab, va, vd):
    E(f"v_mov_b32 v{va}, 0"); E("s_mov_b32 s38, 0x40000")
    LBL(lab+"_POLL")
    E(f"buffer_load_dword v{vd}, v{va}, s[56:59], 0 offen offset:128 sc1")
    E("s_waitcnt vmcnt(0)")
    E(f"v_cmp_ne_u32 vcc, 1, v{vd}")
    E(f"s_cbranch_vccz {lab}_PD")
    E("s_sleep 2"); E("s_sub_u32 s38, s38, 1"); E("s_cmp_lg_u32 s38, 0"); E(f"s_cbranch_scc1 {lab}_POLL")
    LBL(lab+"_PD")
def k_prep():
    head("pc_kernel")
    srd(4, 144, WSB)
    srd(56, 136, 256)
    TS(0)
    E(f"s_cmp_ge_u32 s2, {B_CV+512}"); E("s_cbranch_scc1 P_END")
    E(f"s_cmp_ge_u32 s2, {B_CV}"); E("s_cbranch_scc1 C_CV")
    E(f"s_cmp_ge_u32 s2, {B_PK}"); E("s_cbranch_scc1 P_W2")
    E(f"s_cmp_ge_u32 s2, {B_LN}"); E("s_cbranch_scc1 P_LN")
    srd(8, 120, 512*3072*2); srd(12, 112, 1024)
    E("v_and_b32 v1, 7, v0"); E("v_lshrrev_b32 v2, 3, v0")
    E("v_mul_u32_u24 v3, 98304, v2"); E("v_lshl_add_u32 v3, v1, 4, v3")
    E("s_lshl_b32 s17, s2, 7")
    E("v_lshlrev_b32 v4, 5, v2")
    E("s_waitcnt lgkmcnt(0)")
    E("buffer_load_dwordx4 v[8:11], v4, s[12:15], 0 offen"); E("buffer_load_dwordx4 v[12:15], v4, s[12:15], 0 offen offset:16")
    for i in range(16):
        E(f"buffer_load_dwordx4 {vr(48+4*i,4)}, v3, s[8:11], s17 offen")
        E("s_add_u32 s17, s17, 6144")
    E("v_lshlrev_b32 v5, 7, v0"); E("v_mov_b32 v6, 0"); E(f"s_mov_b32 s18, {hex(FLG)}")
    E("s_waitcnt vmcnt(16)")
    for i in range(8): lo(16+2*i, 8+i); hi(17+2*i, 8+i)
    for i in range(16): E(f"v_mul_f32 v{32+i}, 0xbfb8aa3b, v{16+i}")
    for i in range(16): E(f"v_exp_f32 v{32+i}, v{32+i}")
    for i in range(16): E(f"v_add_f32 v{32+i}, 1.0, v{32+i}")
    for i in range(16): E(f"v_rcp_f32 v{32+i}, v{32+i}")
    for i in range(16): E(f"v_mul_f32 v{16+i}, v{16+i}, v{32+i}")
    for i in range(16): rnd(16+i, 16+i)
    for j in range(8): E(f"v_mov_b32 v{32+j}, 0")
    for i in range(16):
        E(f"s_waitcnt vmcnt({15-i})")
        for j in range(4): lo(40+2*j, 48+4*i+j); hi(41+2*j, 48+4*i+j)
        for j in range(8): E(f"v_fmac_f32 v{32+j}, v{40+j}, v{16+i}")
    E("s_cmp_lg_u32 s2, 0"); E("s_cbranch_scc1 P_NOZ")
    E("buffer_store_dword v6, v5, s[4:7], s18 offen")
    LBL("P_NOZ")
    E("v_lshlrev_b32 v5, 5, v0"); E("v_readfirstlane_b32 s18, v0")
    E("ds_write_b128 v5, v[32:35]"); E("ds_write_b128 v5, v[36:39] offset:16")
    E("s_waitcnt lgkmcnt(0)"); E("s_barrier")
    E("s_cmp_lg_u32 s18, 0"); E("s_cbranch_scc1 P_END")
    E("v_lshlrev_b32 v6, 2, v0")
    for i in range(32): E(f"ds_read_b32 v{48+i}, v6 offset:{256*i}")
    E("s_waitcnt lgkmcnt(0)")
    for st in (16, 8, 4, 2, 1):
        for i in range(st): E(f"v_add_f32 v{48+i}, v{48+i}, v{48+i+st}")
    rnd(48, 48)
    E("s_lshl_b32 s17, s2, 8")
    E(f"buffer_store_dword v48, v6, s[4:7], s17 offen sc1")
    E("s_waitcnt vmcnt(0)")
    TS(7); arrive(0)
    LBL("P_END"); E("s_endpgm")
    LBL("P_LN")
    srd(8, 0, 2048*512*2)
    E(f"s_sub_u32 s16, s2, {B_LN}")
    E("s_and_b32 s17, s16, 7"); E("s_lshl_b32 s17, s17, 1"); E("s_bfe_u32 s18, s16, 0x10003"); E("s_and_b32 s16, s16, 0x70")
    E("s_or_b32 s16, s16, s17"); E("s_or_b32 s16, s16, s18")
    E("v_lshrrev_b32 v1, 6, v0"); E("v_and_b32 v2, 63, v0")
    E("v_lshlrev_b32 v3, 12, v1"); E("v_lshl_add_u32 v3, v2, 4, v3")
    E("s_lshl_b32 s17, s16, 14")
    E("s_waitcnt lgkmcnt(0)")
    for r in range(4): E(f"buffer_load_dwordx4 {vr(8+4*r,4)}, v3, s[8:11], s17 offen offset:{1024*r}")
    for r in range(4):
        E(f"s_waitcnt vmcnt({3-r})")
        for j in range(4): lo(32+8*r+2*j, 8+4*r+j); hi(33+8*r+2*j, 8+4*r+j)
        E(f"v_add_f32 v{24+r}, v{32+8*r}, v{33+8*r}")
        for j in range(2, 8): E(f"v_add_f32 v{24+r}, v{24+r}, v{32+8*r+j}")
    wavesum([24, 25, 26, 27])
    for r in range(4): E(f"v_readlane_b32 s{20+r}, v{24+r}, 63")
    E("s_nop 1")
    for r in range(4): E(f"v_mov_b32 v{24+r}, s{20+r}")
    for r in range(4): E(f"v_mul_f32 v{24+r}, 0x3b000000, v{24+r}")
    for r in range(4):
        E(f"v_mov_b32 v{28+r}, 0")
        for j in range(8):
            E(f"v_sub_f32 v64, v{32+8*r+j}, v{24+r}"); E(f"v_fmac_f32 v{28+r}, v64, v64")
    wavesum([28, 29, 30, 31])
    for r in range(4): E(f"v_readlane_b32 s{20+r}, v{28+r}, 63")
    E("s_nop 1")
    for r in range(4): E(f"v_mov_b32 v{28+r}, s{20+r}")
    for r in range(4): E(f"v_mul_f32 v{28+r}, 0x3b000000, v{28+r}")
    for r in range(4): rnd(28+r, 28+r); rnd(24+r, 24+r)
    for r in range(4): E(f"v_add_f32 v{28+r}, 0x3727c5ac, v{28+r}")
    for r in range(4): rnd(28+r, 28+r)
    for r in range(4): E(f"v_sqrt_f32 v{28+r}, v{28+r}")
    for r in range(4): rnd(28+r, 28+r)
    for r in range(4): E(f"v_rcp_f32 v{28+r}, v{28+r}")
    E("s_nop 0")
    for r in range(4):
        for j in range(0, 8, 2):
            a = 32+8*r+j
            E(f"v_sub_f32 v64, v{a}, v{24+r}"); E(f"v_sub_f32 v65, v{a+1}, v{24+r}")
            E("v_cvt_pk_bf16_f32 v66, v64, v65"); lo(64, 66); hi(65, 66)
            E(f"v_mul_f32 v64, v64, v{28+r}"); E(f"v_mul_f32 v65, v65, v{28+r}")
            E(f"v_cvt_pk_bf16_f32 v{72+4*j+r}, v64, v{a}")
            E(f"v_cvt_pk_bf16_f32 v{72+4*(j+1)+r}, v65, v{a+1}")
    E("v_mul_u32_u24 v4, 528, v2"); E("v_lshl_add_u32 v4, v1, 4, v4")
    for j in range(8): E(f"ds_write_b128 v4, {vr(72+4*j,4)} offset:{64*j}")
    E("s_waitcnt lgkmcnt(0)"); E("s_barrier")
    E("v_and_b32 v5, 3, v0"); E("v_lshrrev_b32 v6, 2, v0")
    E("v_lshrrev_b32 v7, 3, v6"); E("v_mul_u32_u24 v7, 528, v7")
    E("v_and_b32 v4, 7, v6"); E("v_lshl_add_u32 v7, v4, 6, v7"); E("v_lshl_add_u32 v7, v5, 4, v7")
    for i in range(8): E(f"ds_read_b128 {vr(72+4*i,4)}, v7 offset:{528*8*i}")
    E("v_lshlrev_b32 v6, 13, v6"); E("v_lshl_add_u32 v6, v5, 4, v6")
    E("s_lshl_b32 s17, s16, 6"); E(f"s_add_u32 s17, s17, {hex(XT)}")
    for i in range(8):
        E(f"s_waitcnt lgkmcnt({7-i})")
        E(f"buffer_store_dwordx4 {vr(72+4*i,4)}, v6, s[4:7], s17 offen sc1")
        E("s_add_u32 s17, s17, 0x80000")
    E("v_readfirstlane_b32 s18, v0")
    TS(6); E("s_waitcnt vmcnt(0)"); E("s_barrier")
    E("s_cmp_lg_u32 s18, 0"); E("s_cbranch_scc1 P_END")
    TS(7); arrive(0); E("s_endpgm")
    LBL("P_W2")
    srd(8, 96, 1792*512*2)
    E(f"s_sub_u32 s16, s2, {B_PK}")
    E("v_lshrrev_b32 v1, 6, v0"); E("v_and_b32 v2, 63, v0")
    E("v_lshrrev_b32 v3, 1, v1"); E("v_and_b32 v4, 1, v1")
    E("v_lshlrev_b32 v5, 14, v3"); E("v_lshl_add_u32 v5, v4, 12, v5"); E("v_lshl_add_u32 v5, v2, 4, v5")
    E("s_lshl_b32 s17, s16, 15"); E("s_add_u32 s18, s17, 8192")
    E("s_mov_b32 s20, 0x05040100"); E("s_mov_b32 s21, 0x07060302")
    E("s_waitcnt lgkmcnt(0)")
    for e in range(8): E(f"buffer_load_dwordx4 {vr(8+4*e,4)}, v5, s[8:11], s{17+(e>>2)} offen offset:{1024*(e&3)}")
    E("v_mul_u32_u24 v6, 144, v0")
    E("s_lshl_b32 s17, s16, 11"); E(f"s_add_u32 s17, s17, {hex(W2P)}")
    E("s_waitcnt vmcnt(0)")
    for dd in range(8):
        for ep in range(4):
            E(f"v_perm_b32 v{40+4*dd+ep}, v{8+4*(2*ep+1)+(dd>>1)}, v{8+4*(2*ep)+(dd>>1)}, s{20+(dd&1)}")
        E(f"ds_write_b128 v6, {vr(40+4*dd,4)} offset:{16*dd}")
    E("s_waitcnt lgkmcnt(0)")
    trans_store(False)
    TS(6)

class Cnt:
    def __init__(s, name, mx): s.n = name; s.l = []; s.mx = mx
    def add(s, tag): s.l.append(tag)
    def need(s, tag):
        i = max(k for k, t in enumerate(s.l) if t == tag)
        return min(s.mx, len(s.l)-1-i)
```

```python
from gen1 import *
CS = 4160
def k_conv():
    srd(8, 80, 512*1792*2); srd(12, 88, 1792*2)
    E("v_and_b32 v1, 3, v0"); E("v_lshrrev_b32 v2, 2, v0")
    E("v_mul_u32_u24 v3, 28672, v2"); E("v_lshl_add_u32 v3, v1, 4, v3")
    E("s_lshl_b32 s17, s16, 6")
    E("v_lshlrev_b32 v4, 5, v2")
    E("s_waitcnt lgkmcnt(0)")
    E(f"s_mov_b32 s18, {MOD+4*512*4}"); E(f"s_mov_b32 s19, {MOD+3*512*4}")
    for e in range(8):
        E(f"buffer_load_dwordx4 {vr(24+4*e,4)}, v3, s[8:11], s17 offen"); E("s_add_u32 s17, s17, 3584")
    E("v_and_b32 v5, 31, v0"); E("v_lshlrev_b32 v5, 1, v5"); E("s_lshl_b32 s17, s16, 6")
    E("buffer_load_ushort v7, v5, s[12:15], s17 offen")
    poll("W", 8, 9)
    TS(5)
    E("buffer_load_dwordx4 v[8:11], v4, s[4:7], s18 offen sc1"); E("buffer_load_dwordx4 v[12:15], v4, s[4:7], s18 offen offset:16 sc1")
    E("buffer_load_dwordx4 v[16:19], v4, s[4:7], s19 offen sc1"); E("buffer_load_dwordx4 v[20:23], v4, s[4:7], s19 offen offset:16 sc1")
    E("v_mul_u32_u24 v6, 144, v0")
    E("s_lshl_b32 s17, s16, 15"); E(f"s_add_u32 s17, s17, {hex(W1P)}")
    E("s_mov_b32 s20, 0x3f803f80")
    E("s_waitcnt vmcnt(2)")
    for e in range(8): E(f"v_add_f32 v{8+e}, 1.0, v{8+e}")
    for e in range(8): rnd(8+e, 8+e)
    for i in range(16): E(f"v_mov_b32 v{96+i}, 0")
    E("s_waitcnt vmcnt(0)")
    for ff in range(8):
        for e in range(8): (hi if ff & 1 else lo)(56+e, 24+4*e+(ff >> 1))
        for e in range(8): E(f"v_fmac_f32 v{104+ff}, v{56+e}, v{16+e}")
        for e in range(8): E(f"v_mul_f32 v{56+e}, v{56+e}, v{8+e}")
        for ep in range(4): E(f"v_cvt_pk_bf16_f32 v{64+4*ff+ep}, v{56+2*ep}, v{57+2*ep}")
        E(f"ds_write_b128 v6, {vr(64+4*ff,4)} offset:{16*ff}")
        for ep in range(4): E(f"v_dot2_f32_bf16 v{96+ff}, v{64+4*ff+ep}, s20, v{96+ff}")
    trans_store(True)
    E("s_barrier")
    E("v_lshlrev_b32 v4, 5, v0")
    E("ds_write_b128 v4, v[96:99]"); E("ds_write_b128 v4, v[100:103] offset:16")
    E("ds_write_b128 v4, v[104:107] offset:8192"); E("ds_write_b128 v4, v[108:111] offset:8208")
    E("s_waitcnt lgkmcnt(0)"); E("s_barrier")
    E("v_bfe_u32 v1, v0, 5, 1"); E("v_lshlrev_b32 v5, 1, v5"); E("v_lshl_add_u32 v5, v1, 13, v5")
    for i in range(64): E(f"ds_read_b32 v{8+i}, v5 offset:{128*i}")
    E("s_waitcnt lgkmcnt(0) vmcnt(8)")
    for st in (32, 16, 8, 4, 2, 1):
        for i in range(st): E(f"v_add_f32 v{8+i}, v{8+i}, v{8+i+st}")
    lo(7, 7); E("v_cvt_f32_u32 v1, v1"); E("v_fmac_f32 v8, v7, v1")
    E("s_lshl_b32 s17, s16, 7"); E(f"s_add_u32 s17, s17, {hex(S1)}")
    E("buffer_store_dword v8, v5, s[4:7], s17 offen")
    TS(7); E("s_endpgm")
    LBL("C_CV")
    U = 8*CS; TBL = U+4608; PAR = 12288
    for i in range(6): srd(32+4*i, 8+8*i, 512*128*2)
    srd(12, 56, 1024)
    E("s_load_dwordx2 s[8:9], s[0:1], 64")
    E(f"s_sub_u32 s16, s2, {B_CV}")
    E("s_lshl_b32 s17, s16, 2"); E("s_and_b32 s18, s16, 0x1fe"); E("s_lshl_b32 s18, s18, 1")
    E("v_lshlrev_b32 v1, 5, v0"); E("v_lshlrev_b32 v2, 4, v0")
    E("s_lshl_b32 s19, s16, 13"); E(f"s_add_u32 s19, s19, {hex(XT)}")
    E("s_lshl_b32 s20, s16, 8"); E("s_lshl_b32 s21, s16, 1")
    E("s_add_u32 s22, s17, 2048"); E("s_add_u32 s23, s17, 4096")
    E("v_and_b32 v73, 127, v0"); E("v_lshlrev_b32 v74, 1, v73"); E("v_mov_b32 v4, 0")
    E("s_waitcnt lgkmcnt(0)")
    for i in range(6): E(f"buffer_load_ushort v{16+i}, v74, s[{32+4*i}:{35+4*i}], s20 offen")
    E("buffer_load_ushort v22, v4, s[12:15], s21 offen")
    E("s_load_dword s27, s[8:9], s18")
    for i in range(1, 4): E(f"v_mov_b32 v{4+i}, 0")
    E("v_min_u32 v3, 29, v0"); E("v_lshlrev_b32 v3, 4, v3")
    E(f"ds_write_b128 v3, v[4:7] offset:{U}")
    E(f"ds_write_b32 v4, v4 offset:{TBL+32}")
    E("v_and_b32 v3, 7, v0"); E(f"v_mul_u32_u24 v3, {CS}, v3")
    E("v_and_b32 v64, 63, v0"); E("v_lshrrev_b32 v65, 6, v0")
    E("v_lshrrev_b32 v66, 4, v64"); E("v_bfe_u32 v67, v64, 3, 1")
    E("v_sub_u32 v68, v66, v67"); E("v_lshlrev_b32 v68, 4, v68"); E("v_add_u32 v68, v68, v3")
    E("v_lshlrev_b32 v69, 7, v65"); E("v_sub_u32 v68, v68, v69"); E(f"v_add_u32 v68, {4048-3584-64}, v68")
    E("v_and_b32 v70, 15, v64"); E("v_lshlrev_b32 v71, 5, v70"); E("v_lshl_add_u32 v71, v66, 4, v71")
    E("v_sub_u32 v69, v71, v69"); E(f"v_add_u32 v69, {U+448-64}, v69")
    E("v_lshlrev_b32 v71, 1, v71"); E("v_lshlrev_b32 v72, 4, v66"); E("v_sub_u32 v71, v71, v72"); E("v_lshl_add_u32 v71, v65, 13, v71")
    E("v_readfirstlane_b32 s29, v65")
    GA = 124
    E("v_lshlrev_b32 v23, 3, v0"); E("v_sub_u32 v23, 2047, v23"); E("v_cvt_f32_i32 v23, v23")
    for x in range(16): E(f"v_subrev_f32 v{GA+x}, {float(x)!r}, v23") if x in (0,1,2,4) else E(f"v_add_f32 v{GA+x}, {hex(__import__('struct').unpack('<I', __import__('struct').pack('<f', -float(x)))[0])}, v23")
    for x in range(0, 16, 2):
        E(f"v_cvt_pk_bf16_f32 v24, v{GA+x}, v{GA+x+1}"); lo(GA+x, 24); hi(GA+x+1, 24)
    for x in range(15): E(f"v_cvt_i32_f32 v{GA+x}, v{GA+x}")
    E("v_mov_b32 v25, 32")
    for x in range(15):
        if x >= 8: E(f"v_cmp_gt_i32 vcc, 0, v{GA+x}")
        E(f"v_lshrrev_b32 v24, 3, v{GA+x}"); E(f"v_add_lshl_u32 v{GA+x}, v{GA+x}, v24, 2")
        if x >= 8: E(f"v_cndmask_b32 v{GA+x}, v{GA+x}, v25, vcc")
    E("s_waitcnt vmcnt(0)")
    for i in range(7): lo(16+i, 16+i)
    E("v_mul_f32 v22, 0x3fb8aa3b, v22"); E("v_exp_f32 v22, v22"); E("s_nop 0"); rnd(22, 22)
    E("v_mul_f32 v24, v22, v16"); E("v_mul_f32 v24, 0x3fb8aa3b, v24")
    E("v_mul_f32 v25, v22, v17"); E("v_mul_f32 v25, 0.15915494, v25")
    E("v_mul_f32 v18, v22, v18"); E("v_mul_f32 v19, v22, v19")
    E("v_mul_f32 v26, v20, v18"); E("v_fma_f32 v26, -v21, v19, v26")
    E("v_mul_f32 v27, v20, v19"); E("v_fmac_f32 v27, v21, v18")
    RS = 528
    E("v_lshlrev_b32 v73, 2, v73")
    def cexp(d, l):
        E(f"v_mul_f32 v20, {l}, v24"); E(f"v_mul_f32 v21, {l}, v25"); E("v_exp_f32 v20, v20"); E("v_fract_f32 v21, v21")
        E("s_nop 0"); E(f"v_cos_f32 v{d}, v21"); E(f"v_sin_f32 v{d+1}, v21"); E("s_nop 0")
        E(f"v_mul_f32 v{d}, v{d}, v20"); E(f"v_mul_f32 v{d+1}, v{d+1}, v20")
    def cmul(d, x, y):
        E(f"v_pk_mul_f32 v[22:23], {vr(x,2)}, {vr(y,2)} op_sel:[0,0] op_sel_hi:[1,0]")
        E(f"v_pk_fma_f32 {vr(d,2)}, {vr(x,2)}, {vr(y,2)}, v[22:23] op_sel:[1,1,0] op_sel_hi:[0,1,1] neg_lo:[1,0,0]")
    tmp = [0]
    def put(row, x, neg=False):
        t = 104 + (tmp[0] % 8); tmp[0] += 1
        E(f"v_cvt_pk_bf16_f32 v{t}, v{x}, {'-' if neg else ''}v{x+1}"); E(f"ds_write_b32 v73, v{t} offset:{RS*row}")
    cexp(32, "0x43000000")
    E("s_cmp_lt_u32 s29, 2"); E("s_cbranch_scc1 C_H0")
    cexp(34, "4.0")
    E("v_mov_b32 v36, 0x3f80"); E("ds_write_b32 v73, v36")
    put(1, 32); put(16, 34)
    cur = 32
    for i in range(1, 17):
        if i >= 2:
            nxt = 36 + 2*(i & 1); cmul(nxt, cur, 32); cur = nxt; put(i if i < 16 else 40, cur)
        if i < 8:
            cmul(40, cur, 34); put(16 + 4*(i & 3) + (i >> 2), 40)
    E("s_branch C_HJ")
    LBL("C_H0")
    cexp(34, "0x41000000"); cexp(42, "1.0")
    put(41, 26, True); cur = 26
    for j in range(1, 16):
        nxt = 36 + 2*(j & 1); cmul(nxt, cur, 34); cur = nxt; put(41+j, cur, True)
        if j == 1: cmul(44, 42, 42)
        if j == 2: cmul(46, 44, 42); cmul(48, 44, 44)
        if j == 3: cmul(50, 48, 42); cmul(52, 48, 44); cmul(54, 48, 46)
        if j == 4: cmul(56, 32, 32)
        if j == 5: cmul(58, 56, 32)
    for r in range(4):
        put(32+r, 42+4*r); cmul(60, 42+4*r, 32); put(36+r, 60)
    for r, e in ((2, 44), (3, 52)):
        put(16+r, e)
        for g, t in ((1, 32), (2, 56), (3, 58)):
            cmul(60, e, t); put(16+4*g+r, 60)
    LBL("C_HJ")
    E("s_waitcnt lgkmcnt(0)")
    E("s_and_b32 s28, s16, 1"); E("s_lshl_b32 s28, s28, 4"); E("s_lshr_b32 s27, s27, s28"); E("s_lshl_b32 s27, s27, 16")
    E("s_barrier"); TS(3)
    E(f"v_mul_u32_u24 v73, {RS}, v70"); E("v_lshl_add_u32 v73, v66, 4, v73")
    E(f"s_mul_i32 s30, s29, {16*RS}"); E("v_add_u32 v74, s30, v73")
    E("s_cmp_eq_u32 s29, 3"); E("s_cbranch_scc0 C_SK")
    E("s_mov_b64 exec, 1"); poll("C", 28, 30)
    E("s_mov_b64 exec, -1"); TS(5); E("s_branch C_T3")
    LBL("C_SK")
    for k in range(8):
        E(f"ds_read_b128 {vr(32+8*k,4)}, v74 offset:{64*k}") if k < 4 else E(f"ds_read_b128 {vr(44+8*k,4)}, v74 offset:{64*k}")
        E(f"ds_read_b128 {vr(36+8*k,4)}, v73 offset:{41*RS+64*k}") if k < 4 else E(f"ds_read_b128 {vr(48+8*k,4)}, v73 offset:{41*RS+64*k}")
    E("v_mul_u32_u24 v28, 36, v70"); E("v_mul_u32_u24 v30, 576, v66"); E("v_add_u32 v30, v30, v28")
    E("v_lshlrev_b32 v31, 2, v66"); E("v_add_u32 v31, 9204, v31"); E("v_add_u32 v31, v31, v28")
    E("v_cmp_lt_u32 vcc, 1, v66"); E("v_mul_u32_u24 v29, 2304, v66"); E("v_add_u32 v29, v29, v28"); E("v_cndmask_b32 v31, v30, v31, vcc")
    E("s_waitcnt lgkmcnt(0)")
    for k in range(8):
        b = 32+8*k if k < 4 else 44+8*k
        E(f"v_mfma_f32_16x16x32_bf16 v[16:19], {vr(b,4)}, {vr(b+4,4)}, " + ("0" if k == 0 else "v[16:19]"))
    E("s_nop 7")
    E("s_cmp_eq_u32 s29, 1"); E("s_cbranch_scc1 C_T1"); E("s_cmp_eq_u32 s29, 2"); E("s_cbranch_scc1 C_T2")
    for r in range(4): E(f"ds_write_b32 v29, v{16+r} offset:{TBL+576*r}")
    E("s_branch C_T3")
    LBL("C_T1")
    for r in range(4): E(f"ds_write_b32 v30, v{16+r} offset:{TBL+4*[4,580,2,6][r]}")
    E("s_branch C_T3")
    LBL("C_T2")
    for r in range(4): E(f"ds_write_b32 v31, v{16+r} offset:{TBL+4*(1+2*r)}")
    LBL("C_T3")
    E("s_waitcnt lgkmcnt(0)"); E("s_barrier"); TS(4)
    E("buffer_load_dwordx4 v[8:11], v1, s[4:7], s19 offen sc1"); E("buffer_load_dwordx4 v[12:15], v1, s[4:7], s19 offen offset:16 sc1")
    for i, sr in enumerate((17, 22, 23)): E(f"buffer_load_dword v{28+i}, v4, s[4:7], s{sr} offen sc1")
    for x in range(15): E(f"ds_read_b32 v{32+x}, v{GA+x} offset:{TBL}")
    E("ds_write_b128 v3, v[4:7] offset:4096")
    E("s_waitcnt lgkmcnt(1)")
    for p in range(2):
        for a in range(2):
            for k in range(a, 6+a): E(f"v_cvt_pk_bf16_f32 v{76+8*(2*p+a)+k-a}, v{32+2*k+p}, v{33+2*k+p}")
    for c in range(8):
        sft = 7-c; p = sft & 1; st = sft >> 1; a = st & 1
        E(f"ds_write_b128 v2, {vr(76+8*(2*p+a)+st-a,4)} offset:{CS*c}")
    E("s_waitcnt vmcnt(0)")
    E("v_add_f32 v72, 1.0, v29"); rnd(72, 72); E("v_readfirstlane_b32 s26, v30")
    for e in range(8): lo(16+e, 8+e)
    for e in range(8): E(f"v_mul_f32 v{16+e}, v{16+e}, v72")
    for e in range(0, 8, 2):
        E(f"v_cvt_pk_bf16_f32 v24, v{16+e}, v{17+e}"); lo(16+e, 24); hi(17+e, 24)
    for e in range(8): E(f"v_add_f32 v{16+e}, v28, v{16+e}")
    for e in range(0, 8, 2): E(f"v_cvt_pk_bf16_f32 v{24+e//2}, v{16+e}, v{17+e}")
    E(f"ds_write_b128 v2, v[24:27] offset:{U+480}")
    E("s_waitcnt lgkmcnt(0)"); E("s_barrier")
    TS(1)
    T0, B0, AC = 76, 108, 32
    for s in range(2):
        o = 64*(1-s)
        for q in range(8):
            E(f"ds_read_b128 {vr(T0+4*q,4)}, v68 offset:{o+(7-q)*512}")
            E(f"ds_read_b128 {vr(B0+4*q,4)}, v69 offset:{o+512*q}")
        done = set()
        for n in range(8):
            E(f"s_waitcnt lgkmcnt({2*(7-n)})")
            for q in range(n+1):
                for i in range(n+1):
                    if (q == n or i == n) and q+i <= 7:
                        J = q+i
                        c = "0" if (s == 0 and J not in done) else vr(AC+4*J, 4)
                        done.add(J)
                        E(f"v_mfma_f32_16x16x32_bf16 {vr(AC+4*J,4)}, {vr(T0+4*q,4)}, {vr(B0+4*i,4)}, {c}")
    TS(2); E("s_barrier"); E("s_nop 7")
    for J in range(8): E(f"ds_write_b128 v71, {vr(AC+4*J,4)} offset:{1024*J}")
    E("s_waitcnt lgkmcnt(0)"); E("s_barrier")
    for w in range(4):
        E(f"ds_read_b128 {vr(32+8*w,4)}, v1 offset:{8192*w}"); E(f"ds_read_b128 {vr(36+8*w,4)}, v1 offset:{8192*w+16}")
    for e in range(0, 8, 2): lo(16+e, 24+e//2); hi(17+e, 24+e//2)
    for e in range(8): E(f"v_mul_f32 v{16+e}, s27, v{16+e}")
    def rnd8(b):
        for e in range(0, 8, 2):
            E(f"v_cvt_pk_bf16_f32 v28, v{b+e}, v{b+1+e}"); lo(b+e, 28); hi(b+1+e, 28)
    rnd8(16)
    for e in range(8): hi(8+e, 8+e)
    E("s_waitcnt lgkmcnt(0)")
    for e in range(8):
        E(f"v_add_f32 v{32+e}, v{32+e}, v{40+e}"); E(f"v_add_f32 v{48+e}, v{48+e}, v{56+e}")
    for e in range(8): E(f"v_add_f32 v{32+e}, v{32+e}, v{48+e}")
    rnd8(32)
    for e in range(8): E(f"v_add_f32 v{32+e}, v{32+e}, v{16+e}")
    rnd8(32)
    for e in range(8): E(f"v_mul_f32 v{32+e}, s26, v{32+e}")
    rnd8(32)
    for e in range(8): E(f"v_add_f32 v{32+e}, v{32+e}, v{8+e}")
    for e in range(0, 8, 2): E(f"v_cvt_pk_bf16_f32 v{24+e//2}, v{32+e}, v{33+e}")
    E("s_lshl_b32 s19, s16, 12"); E(f"s_add_u32 s19, s19, {hex(X1T)}")
    E("buffer_store_dwordx4 v[24:27], v2, s[4:7], s19 offen")
    TS(7); E("s_endpgm")
```

```python
from gen2 import *
def k_ffn():
    head("ffn_kernel")
    srd(4, 144, WSB); srd(8, 128, 2048*512*2); srd(12, 104, 1024)
    E("s_cmp_ge_u32 s2, 256"); E("s_cbranch_scc1 F_END")
    E("s_and_b32 s16, s2, 7"); E("s_lshl_b32 s16, s16, 2"); E("s_bfe_u32 s17, s2, 0x20003"); E("s_add_u32 s16, s16, s17")
    E("s_lshr_b32 s17, s2, 5")
    E("v_lshrrev_b32 v1, 6, v0"); E("v_and_b32 v2, 63, v0"); E("v_lshlrev_b32 v8, 4, v2")
    E("v_readfirstlane_b32 s18, v1")
    E("v_and_b32 v3, 7, v0"); E("v_lshrrev_b32 v4, 3, v0")
    E("v_lshlrev_b32 v5, 12, v4"); E("v_lshl_add_u32 v5, v3, 4, v5")
    E("s_lshl_b32 s19, s16, 7"); E(f"s_add_u32 s19, s19, {hex(X1T)}")
    E("s_mul_i32 s32, s18, 14"); E("s_mul_i32 s33, s17, 224"); E("s_add_u32 s33, s33, s32"); E("s_lshl_b32 s33, s33, 10")
    E(f"s_add_u32 s34, s33, {hex(W2P)}"); E(f"s_add_u32 s35, s34, {112*1024}")
    E("s_mul_i32 s33, s16, 224"); E("s_add_u32 s33, s33, s32"); E("s_lshl_b32 s33, s33, 10")
    E(f"s_add_u32 s36, s33, {hex(HP)}"); E(f"s_add_u32 s37, s36, {112*1024}")
    E("s_waitcnt lgkmcnt(0)"); TS(0)
    E("v_lshlrev_b32 v6, 6, v4"); E("v_and_b32 v7, 3, v3"); E("v_lshl_add_u32 v6, v7, 4, v6")
    E("v_lshrrev_b32 v7, 2, v3"); E("v_lshl_add_u32 v6, v7, 15, v6")
    E("s_mul_i32 s20, s17, 7"); E("s_add_u32 s20, s20, s18")
    def w2ld(k):
        ks, dt = k >> 1, k & 1
        E(f"buffer_load_dwordx4 {vr(48+4*k,4)}, v8, s[4:7], s{34+dt} offen offset:{1024*(ks&3)}")
        if dt == 1 and ks & 3 == 3: E("s_add_u32 s34, s34, 4096"); E("s_add_u32 s35, s35, 4096")
    E("s_cmp_eq_u32 s18, 7"); E("s_cbranch_scc1 F_ST")
    E("s_lshl_b32 s21, s20, 15"); E(f"s_add_u32 s21, s21, {hex(W1P)}")
    VM = Cnt("vm", 63); LG = Cnt("lg", 15)
    def tld(i):
        E(f"buffer_load_dwordx4 {vr(176+4*i,4)}, v5, s[4:7], s19 offen"); E("s_add_u32 s19, s19, 0x40000"); VM.add(("T", i))
    def twr(i):
        E(f"s_waitcnt vmcnt({VM.need(('T', i))})"); E(f"ds_write_b128 v6, {vr(176+4*i,4)} offset:{4096*i}"); LG.add(("W", i))
    for c in range(4):
        tld(2*c); tld(2*c+1)
        for k in range(8*c, 8*c+8):
            E(f"buffer_load_dwordx4 {vr(48+4*k,4)}, v8, s[4:7], s21 offen offset:{1024*(k&3)}"); VM.add(("A", k))
            if k & 3 == 3: E("s_add_u32 s21, s21, 4096")
    E("v_lshrrev_b32 v9, 5, v2"); E("v_lshlrev_b32 v9, 4, v9")
    E("s_lshl_b32 s21, s20, 7"); E(f"s_add_u32 s22, s21, {hex(S2)}"); E(f"s_add_u32 s21, s21, {hex(S1)}")
    E("v_lshrrev_b32 v10, 5, v2"); E("v_lshlrev_b32 v10, 9, v10"); E("v_bfe_u32 v11, v2, 2, 2"); E("v_lshl_add_u32 v10, v11, 6, v10")
    E("v_bfe_u32 v11, v2, 4, 1"); E("v_lshl_add_u32 v10, v11, 5, v10"); E("v_and_b32 v11, 3, v2"); E("v_lshl_add_u32 v10, v11, 3, v10")
    twr(0); twr(1)
    BF = 208
    def rdB(k):
        b = BF + 8*(k % 4)
        for th in range(2):
            for h in range(2):
                E(f"ds_read_b64_tr_b16 {vr(b+4*th+2*h,2)}, v10 offset:{32768*th+1024*k+256*h}"); LG.add(("B", k))
    for c in range(4):
        E("s_waitcnt lgkmcnt(0)"); E("s_barrier")
        if c == 3:
            for a in range(4):
                E(f"buffer_load_dwordx4 {vr(176+4*a,4)}, v9, s[4:7], s21 offen offset:{32*a}"); VM.add("S")
                E(f"buffer_load_dwordx4 {vr(192+4*a,4)}, v9, s[4:7], s22 offen offset:{32*a}"); VM.add("S")
        for k in range(8*c, 8*c+3): rdB(k)
        for k in range(8*c, 8*c+8):
            if k+3 < 8*c+8: rdB(k+3)
            E(f"s_waitcnt vmcnt({VM.need(('A', k))}) lgkmcnt({LG.need(('B', k))})")
            for th in range(2):
                cc = "0" if k == 0 else vr(16+16*th, 16)
                E(f"v_mfma_f32_32x32x16_bf16 {vr(16+16*th,16)}, {vr(48+4*k,4)}, {vr(BF+8*(k%4)+4*th,4)}, {cc}")
            if 24 <= k < 31:
                for kk in (2*(k-24), 2*(k-24)+1): w2ld(kk); VM.add("W2")
            if k % 8 == 5 and c < 3: twr(2*c+2); twr(2*c+3)
    SW = VM.need("S")
    E("s_barrier")
    E("v_and_b32 v11, 31, v2"); E("v_lshlrev_b32 v11, 3, v11"); E("v_add_u32 v11, 0x10000, v11")
    E("ds_read_b64 v[12:13], v11"); E("ds_read_b64 v[14:15], v11 offset:256")
    E("s_mul_i32 s21, s16, 224"); E("s_lshl_b32 s22, s20, 1"); E("s_add_u32 s21, s21, s22"); E("s_lshl_b32 s21, s21, 10")
    E(f"s_add_u32 s21, s21, {hex(HP)}"); E(f"s_add_u32 s22, s21, {112*1024}")
    E(f"s_waitcnt vmcnt({SW}) lgkmcnt(0)"); E("s_nop 4")
    for th in range(2):
        a = 16+16*th
        for r in range(16): E(f"v_fma_f32 v{a+r}, -v{12+2*th}, v{176+r}, v{a+r}")
        for r in range(16): E(f"v_fma_f32 v{a+r}, v{a+r}, v{13+2*th}, v{192+r}")
        for r in range(16): E(f"v_max_f32 v{a+r}, 0, v{a+r}")
        for r in range(16): E(f"v_mul_f32 v{a+r}, v{a+r}, v{a+r}")
        for r in range(8): E(f"v_cvt_pk_bf16_f32 v{160+8*th+r}, v{a+2*r}, v{a+2*r+1}")
        E(f"buffer_store_dwordx4 {vr(160+8*th,4)}, v8, s[4:7], s{21+th} offen sc1")
        E(f"buffer_store_dwordx4 {vr(164+8*th,4)}, v8, s[4:7], s{21+th} offen offset:1024 sc1")
    for kk in range(14, 28): w2ld(kk)
    E("s_waitcnt vmcnt(14)"); E("s_barrier"); TS(2)
    LBL("F_P2")
    E("s_barrier")
    LBL("F_GO"); TS(3)
    ring = [16, 24, 32, 40, 160, 168, 240] + ([] if DBG else [248])
    RD = len(ring)
    def hld(k):
        for th in range(2): E(f"buffer_load_dwordx4 {vr(ring[k%RD]+4*th,4)}, v8, s[4:7], s{36+th} offen offset:{1024*(k&3)} sc1")
        if k & 3 == 3: E("s_add_u32 s36, s36, 4096"); E("s_add_u32 s37, s37, 4096")
    for k in range(RD): hld(k)
    E("s_lshl_b32 s26, s17, 6"); E("s_lshl_b32 s27, s16, 6")
    E("v_and_b32 v4, 7, v0"); E("v_lshrrev_b32 v5, 3, v0")
    E("v_lshlrev_b32 v6, 15, v4"); E("v_lshl_add_u32 v6, v5, 1, v6")
    E("s_lshl_b32 s28, s26, 12"); E("s_lshl_b32 s29, s27, 1"); E("s_add_u32 s28, s28, s29"); E(f"s_add_u32 s28, s28, {hex(X1T)}")
    E("v_lshlrev_b32 v7, 5, v4"); E("s_lshl_b32 s29, s26, 2"); E(f"s_add_u32 s29, s29, {MOD+5*512*4}")
    E("v_lshlrev_b32 v3, 4, v4"); E("s_lshl_b32 s31, s26, 1")
    issued = RD; extra = 0
    for k in range(14):
        younger = 2*(issued-1-k) + extra
        E(f"s_waitcnt vmcnt({younger})")
        for dt in range(2):
            for th in range(2):
                a = 176+16*(2*dt+th)
                E(f"v_mfma_f32_32x32x16_bf16 {vr(a,16)}, {vr(48+8*k+4*dt,4)}, {vr(ring[k%RD]+4*th,4)}, " + ("0" if k == 0 else vr(a, 16)))
        if issued < 14: hld(issued); issued += 1
        elif extra == 0:
            for r in range(8):
                E(f"buffer_load_ushort v{48+r}, v6, s[4:7], s28 offen"); E("s_add_u32 s28, s28, 4096")
            for a in range(2): E(f"buffer_load_dwordx4 {vr(56+4*a,4)}, v7, s[4:7], s29 offen offset:{16*a}")
            E("buffer_load_dwordx4 v[64:67], v3, s[12:15], s31 offen")
            extra = 11
    TS(4)
    E("v_mul_u32_u24 v1, 16896, v1"); E("v_add_u32 v1, v1, v8"); E("s_nop 7"); E("s_nop 3")
    for dt in range(2):
        for th in range(2):
            for a in range(4): E(f"ds_write_b128 v1, {vr(176+16*(2*dt+th)+4*a,4)} offset:{8448*th+1056*(4*dt+a)}")
    E("v_lshrrev_b32 v1, 5, v5"); E("v_mul_u32_u24 v1, 8448, v1"); E("v_mul_u32_u24 v9, 1056, v4"); E("v_add_u32 v1, v1, v9")
    E("v_and_b32 v9, 31, v5"); E("v_lshl_add_u32 v1, v9, 4, v1"); E(f"v_add_u32 v9, {3*16896}, v1"); E(f"v_add_u32 v10, {6*16896}, v1")
    E("s_waitcnt lgkmcnt(0)"); E("s_barrier")
    for w in range(8):
        for a in range(2): E(f"ds_read_b128 {vr(80+8*w+4*a,4)}, v{[1,9,10][w//3]} offset:{16896*(w%3)+512*a}")
    E("v_lshlrev_b32 v6, 10, v5"); E("v_lshl_add_u32 v6, v4, 4, v6")
    E("s_lshl_b32 s28, s27, 10"); E("s_lshl_b32 s29, s26, 1"); E("s_add_u32 s28, s28, s29")
    E("s_waitcnt vmcnt(0)")
    for r in range(8): lo(48+r, 48+r)
    for a in range(4): lo(68+2*a, 64+a); hi(69+2*a, 64+a)
    E("s_waitcnt lgkmcnt(0)")
    for st in (32, 16, 8):
        for r in range(st): E(f"v_add_f32 v{80+r}, v{80+r}, v{80+st+r}")
    def rn8(b):
        for e in range(0, 8, 2):
            E(f"v_cvt_pk_bf16_f32 v24, v{b+e}, v{b+1+e}"); lo(b+e, 24); hi(b+1+e, 24)
    rn8(80)
    for r in range(8): E(f"v_add_f32 v{80+r}, v{80+r}, v{68+r}")
    rn8(80)
    for r in range(8): E(f"v_mul_f32 v{80+r}, v{80+r}, v{56+r}")
    rn8(80)
    for r in range(8): E(f"v_add_f32 v{80+r}, v{80+r}, v{48+r}")
    for e in range(4): E(f"v_cvt_pk_bf16_f32 v{24+e}, v{80+2*e}, v{81+2*e}")
    E("buffer_store_dwordx4 v[24:27], v6, s[8:11], s28 offen")
    TS(7)
    LBL("F_END")
    E("s_endpgm")
    LBL("F_ST")
    VM.l = []; LG.l = []
    E("s_setprio 2")
    for i in range(8): tld(i)
    for k in range(28): w2ld(k); VM.add("W2")
    E("v_lshrrev_b32 v10, 2, v2"); E("v_lshlrev_b32 v10, 6, v10"); E("v_and_b32 v11, 3, v2"); E("v_lshl_add_u32 v10, v11, 3, v10")
    for i in range(4): E(f"v_mov_b32 v{12+i}, 0x3f803f80")
    twr(0); twr(1)
    SR = [160, 208, 224]
    def rdS(k):
        b = SR[k % 3]
        for tg in range(4):
            for h in range(2):
                E(f"ds_read_b64_tr_b16 {vr(b+4*tg+2*h,2)}, v10 offset:{32768*(tg>>1)+32*(tg&1)+2048*k+1024*h}"); LG.add(("B", k))
    for c in range(4):
        E("s_waitcnt lgkmcnt(0)"); E("s_barrier")
        rdS(4*c); rdS(4*c+1)
        for k in range(4*c, 4*c+4):
            E(f"s_waitcnt lgkmcnt({LG.need(('B', k))})")
            if k+2 < 4*c+4: rdS(k+2)
            for tg in range(4):
                f = vr(SR[k % 3]+4*tg, 4)
                E(f"v_mfma_f32_16x16x32_bf16 {vr(16+4*tg,4)}, {f}, {f}, " + ("0" if k == 0 else vr(16+4*tg, 4)))
                E(f"v_mfma_f32_16x16x32_bf16 {vr(32+4*tg,4)}, v[12:15], {f}, " + ("0" if k == 0 else vr(32+4*tg, 4)))
            if k % 4 == 2 and c < 3: twr(2*c+2); twr(2*c+3)
    E("v_and_b32 v11, 3, v2")
    E("v_cmp_eq_u32 s[24:25], 1, v11"); E("v_cmp_eq_u32 s[26:27], 2, v11"); E("v_cmp_eq_u32 s[28:29], 3, v11")
    E("v_bfe_u32 v3, v2, 2, 2"); E("v_lshrrev_b32 v4, 4, v2"); E("v_cmp_eq_u32 vcc, v3, v4")
    E("v_and_b32 v5, 15, v2"); E("v_lshlrev_b32 v5, 3, v5"); E("v_add_u32 v5, 0x10000, v5"); E("s_nop 7")
    for tg in range(4):
        q = 16+4*tg; m = 32+4*tg
        E(f"v_cndmask_b32 v{q}, v{q}, v{q+1}, s[24:25]"); E(f"v_cndmask_b32 v{q}, v{q}, v{q+2}, s[26:27]"); E(f"v_cndmask_b32 v{q}, v{q}, v{q+3}, s[28:29]")
        E(f"v_mul_f32 v{m}, 0x3b000000, v{m}"); E(f"v_mul_f32 v{q}, 0x3b000000, v{q}")
        E(f"v_fma_f32 v{q}, -v{m}, v{m}, v{q}"); E(f"v_max_f32 v{q}, 0, v{q}")
        rnd(q, q); rnd(m, m)
        E(f"v_add_f32 v{q}, 0x3727c5ac, v{q}"); rnd(q, q)
        E(f"v_sqrt_f32 v{q}, v{q}"); E("s_nop 0"); rnd(q, q)
        E(f"v_rcp_f32 v{m+1}, v{q}")
    E("s_and_saveexec_b64 s[30:31], vcc")
    for tg in range(4): E(f"ds_write_b64 v5, {vr(32+4*tg,2)} offset:{128*tg}")
    E("s_mov_b64 exec, s[30:31]")
    E("s_waitcnt lgkmcnt(0)"); TS(1); E("s_barrier")
    E("v_and_b32 v9, 7, v2"); E("v_lshlrev_b32 v9, 7, v9"); E("v_mov_b32 v10, 1"); E("v_mov_b32 v12, 0")
    E("s_lshl_b32 s21, s16, 10"); E(f"s_add_u32 s21, s21, {hex(FLG)}")
    E("s_lshl_b32 s22, s17, 7"); E("s_add_u32 s22, s22, s21")
    E("s_mov_b32 s38, 0x40000")
    E("s_barrier")
    E("s_mov_b64 exec, 1")
    E("buffer_store_dword v10, v12, s[4:7], s22 offen sc1")
    E("s_mov_b64 exec, -1")
    LBL("F_POLL")
    E("buffer_load_dword v11, v9, s[4:7], s21 offen sc1")
    E("s_waitcnt vmcnt(0)")
    E("v_cmp_ne_u32 vcc, 1, v11")
    E("s_cbranch_vccz F_PD")
    E("s_sleep 1"); E("s_sub_u32 s38, s38, 1"); E("s_cmp_lg_u32 s38, 0"); E("s_cbranch_scc1 F_POLL")
    LBL("F_PD")
    E("s_setprio 0"); E("s_branch F_P2")

def k_pc(): k_prep(); k_conv()
KS = [("pc_kernel", B_CV+512, 256, 8*CS+4608+9792, 140, k_pc),
      ("ffn_kernel", 256, 512, 135168, 256, k_ffn)]
def build(path):
    ref = open("adaLN_cond__ssm_conv_s4__dense_activation_squared_relu__prompt.s.ref").read().split("\n")
    hdr = [l for l in ref if l.startswith(";") and "@launch" not in l]
    for n, g, b, lds, vg, f in KS: hdr.append(f"; @launch kernel={n} grid=({g},1,1) block=({b},1,1) lds={lds}")
    L.clear()
    for i, (n, g, b, lds, vg, f) in enumerate(KS): KIDX[0] = i; TSV[0] = 252 if vg > 250 else vg; f()
    out = hdr + ['.amdgcn_target "amdgcn-amd-amdhsa--gfx950"', ".text"] + L + ['.section .rodata,"a"']
    for n, g, b, lds, vg, f in KS:
        if DBG and vg < 250: vg += 4
        out += [".p2align 6", f".amdhsa_kernel {n}", f"  .amdhsa_next_free_vgpr {vg}", "  .amdhsa_next_free_sgpr 64",
                f"  .amdhsa_accum_offset {vg}", "  .amdhsa_group_segment_fixed_size 0", "  .amdhsa_kernarg_size 152",
                "  .amdhsa_user_sgpr_count 2", "  .amdhsa_user_sgpr_kernarg_segment_ptr 1", "  .amdhsa_system_sgpr_workgroup_id_x 1", ".end_amdhsa_kernel"]
    open(path, "w").write("\n".join(out) + "\n")
if __name__ == "__main__":
    import sys
    build(sys.argv[1] if len(sys.argv) > 1 else "adaLN_cond__ssm_conv_s4__dense_activation_squared_relu__prompt.s")
```

```python
from gen1 import *
CS = 4160
GP = int(os.environ.get("GP", "1"))
def k_conv():
    srd(8, 80, 512*1792*2); srd(12, 88, 1792*2)
    E("v_and_b32 v1, 3, v0"); E("v_lshrrev_b32 v2, 2, v0")
    E("v_mul_u32_u24 v3, 28672, v2"); E("v_lshl_add_u32 v3, v1, 4, v3")
    E("s_lshl_b32 s17, s16, 6")
    E("v_lshlrev_b32 v4, 5, v2")
    E("s_waitcnt lgkmcnt(0)")
    E(f"s_mov_b32 s18, {MOD+4*512*4}"); E(f"s_mov_b32 s19, {MOD+3*512*4}")
    for e in range(8):
        E(f"buffer_load_dwordx4 {vr(24+4*e,4)}, v3, s[8:11], s17 offen"); E("s_add_u32 s17, s17, 3584")
    E("v_and_b32 v5, 31, v0"); E("v_lshlrev_b32 v5, 1, v5"); E("s_lshl_b32 s17, s16, 6")
    E("buffer_load_ushort v7, v5, s[12:15], s17 offen")
    poll("W", 8, 9)
    TS(5)
    E("buffer_load_dwordx4 v[8:11], v4, s[4:7], s18 offen sc1"); E("buffer_load_dwordx4 v[12:15], v4, s[4:7], s18 offen offset:16 sc1")
    E("buffer_load_dwordx4 v[16:19], v4, s[4:7], s19 offen sc1"); E("buffer_load_dwordx4 v[20:23], v4, s[4:7], s19 offen offset:16 sc1")
    E("v_mul_u32_u24 v6, 144, v0")
    E("s_lshl_b32 s17, s16, 15"); E(f"s_add_u32 s17, s17, {hex(W1P)}")
    E("s_mov_b32 s20, 0x3f803f80")
    E("s_waitcnt vmcnt(2)")
    for e in range(8): E(f"v_add_f32 v{8+e}, 1.0, v{8+e}")
    for e in range(8): rnd(8+e, 8+e)
    for i in range(16): E(f"v_mov_b32 v{96+i}, 0")
    E("s_waitcnt vmcnt(0)")
    for ff in range(8):
        for e in range(8): (hi if ff & 1 else lo)(56+e, 24+4*e+(ff >> 1))
        for e in range(8): E(f"v_fmac_f32 v{104+ff}, v{56+e}, v{16+e}")
        for e in range(8): E(f"v_mul_f32 v{56+e}, v{56+e}, v{8+e}")
        for ep in range(4): E(f"v_cvt_pk_bf16_f32 v{64+4*ff+ep}, v{56+2*ep}, v{57+2*ep}")
        E(f"ds_write_b128 v6, {vr(64+4*ff,4)} offset:{16*ff}")
        for ep in range(4): E(f"v_dot2_f32_bf16 v{96+ff}, v{64+4*ff+ep}, s20, v{96+ff}")
    trans_store(True)
    E("s_barrier")
    E("v_lshlrev_b32 v4, 5, v0")
    E("ds_write_b128 v4, v[96:99]"); E("ds_write_b128 v4, v[100:103] offset:16")
    E("ds_write_b128 v4, v[104:107] offset:8192"); E("ds_write_b128 v4, v[108:111] offset:8208")
    E("s_waitcnt lgkmcnt(0)"); E("s_barrier")
    E("v_bfe_u32 v1, v0, 5, 1"); E("v_lshlrev_b32 v5, 1, v5"); E("v_lshl_add_u32 v5, v1, 13, v5")
    for i in range(64): E(f"ds_read_b32 v{8+i}, v5 offset:{128*i}")
    E("s_waitcnt lgkmcnt(0) vmcnt(8)")
    for st in (32, 16, 8, 4, 2, 1):
        for i in range(st): E(f"v_add_f32 v{8+i}, v{8+i}, v{8+i+st}")
    lo(7, 7); E("v_cvt_f32_u32 v1, v1"); E("v_fmac_f32 v8, v7, v1")
    E("s_lshl_b32 s17, s16, 7"); E(f"s_add_u32 s17, s17, {hex(S1)}")
    E("buffer_store_dword v8, v5, s[4:7], s17 offen")
    TS(7); E("s_endpgm")
    LBL("C_CV")
    U = 8*CS; TBL = U+4608; PAR = 12288
    for i in range(6): srd(32+4*i, 8+8*i, 512*128*2)
    srd(12, 56, 1024)
    E("s_load_dwordx2 s[8:9], s[0:1], 64")
    E(f"s_sub_u32 s16, s2, {B_CV}")
    E("s_lshl_b32 s17, s16, 2"); E("s_and_b32 s18, s16, 0x1fe"); E("s_lshl_b32 s18, s18, 1")
    E("v_lshlrev_b32 v1, 5, v0"); E("v_lshlrev_b32 v2, 4, v0")
    E("s_lshl_b32 s19, s16, 13"); E(f"s_add_u32 s19, s19, {hex(XT)}")
    E("s_lshl_b32 s20, s16, 8"); E("s_lshl_b32 s21, s16, 1")
    E("s_add_u32 s22, s17, 2048"); E("s_add_u32 s23, s17, 4096")
    E("v_and_b32 v73, 127, v0"); E("v_lshlrev_b32 v74, 1, v73"); E("v_mov_b32 v4, 0")
    E("s_waitcnt lgkmcnt(0)")
    for i in range(6): E(f"buffer_load_ushort v{16+i}, v74, s[{32+4*i}:{35+4*i}], s20 offen")
    E("buffer_load_ushort v22, v4, s[12:15], s21 offen")
    E("s_load_dword s27, s[8:9], s18")
    for i in range(1, 4): E(f"v_mov_b32 v{4+i}, 0")
    E("v_min_u32 v3, 29, v0"); E("v_lshlrev_b32 v3, 4, v3")
    E(f"ds_write_b128 v3, v[4:7] offset:{U}")
    E(f"ds_write_b32 v4, v4 offset:{TBL+32}")
    E("v_and_b32 v3, 7, v0"); E(f"v_mul_u32_u24 v3, {CS}, v3")
    E("v_and_b32 v64, 63, v0"); E("v_lshrrev_b32 v65, 6, v0")
    E("v_lshrrev_b32 v66, 4, v64"); E("v_bfe_u32 v67, v64, 3, 1")
    E("v_sub_u32 v68, v66, v67"); E("v_lshlrev_b32 v68, 4, v68"); E("v_add_u32 v68, v68, v3")
    E("v_lshlrev_b32 v69, 7, v65"); E("v_sub_u32 v68, v68, v69"); E(f"v_add_u32 v68, {4048-3584-64}, v68")
    E("v_and_b32 v70, 15, v64"); E("v_lshlrev_b32 v71, 5, v70"); E("v_lshl_add_u32 v71, v66, 4, v71")
    E("v_sub_u32 v69, v71, v69"); E(f"v_add_u32 v69, {U+448-64}, v69")
    E("v_lshlrev_b32 v71, 1, v71"); E("v_lshlrev_b32 v72, 4, v66"); E("v_sub_u32 v71, v71, v72"); E("v_lshl_add_u32 v71, v65, 13, v71")
    E("v_readfirstlane_b32 s29, v65")
    GA = 124
    E("v_lshlrev_b32 v23, 3, v0"); E("v_sub_u32 v23, 2047, v23"); E("v_cvt_f32_i32 v23, v23")
    for x in range(16): E(f"v_subrev_f32 v{GA+x}, {float(x)!r}, v23") if x in (0,1,2,4) else E(f"v_add_f32 v{GA+x}, {hex(__import__('struct').unpack('<I', __import__('struct').pack('<f', -float(x)))[0])}, v23")
    for x in range(0, 16, 2):
        E(f"v_cvt_pk_bf16_f32 v24, v{GA+x}, v{GA+x+1}"); lo(GA+x, 24); hi(GA+x+1, 24)
    for x in range(15): E(f"v_cvt_i32_f32 v{GA+x}, v{GA+x}")
    E("v_mov_b32 v25, 32")
    for x in range(15):
        if x >= 8: E(f"v_cmp_gt_i32 vcc, 0, v{GA+x}")
        E(f"v_lshrrev_b32 v24, 3, v{GA+x}"); E(f"v_add_lshl_u32 v{GA+x}, v{GA+x}, v24, 2")
        if x >= 8: E(f"v_cndmask_b32 v{GA+x}, v{GA+x}, v25, vcc")
    E("s_waitcnt vmcnt(0)")
    for i in range(7): lo(16+i, 16+i)
    E("v_mul_f32 v22, 0x3fb8aa3b, v22"); E("v_exp_f32 v22, v22"); E("s_nop 0"); rnd(22, 22)
    E("v_mul_f32 v24, v22, v16"); E("v_mul_f32 v24, 0x3fb8aa3b, v24")
    E("v_mul_f32 v25, v22, v17"); E("v_mul_f32 v25, 0.15915494, v25")
    E("v_mul_f32 v18, v22, v18"); E("v_mul_f32 v19, v22, v19")
    E("v_mul_f32 v26, v20, v18"); E("v_fma_f32 v26, -v21, v19, v26")
    E("v_mul_f32 v27, v20, v19"); E("v_fmac_f32 v27, v21, v18")
    RS = 528
    E("v_lshlrev_b32 v73, 2, v73")
    def cexp(d, l):
        E(f"v_mul_f32 v20, {l}, v24"); E(f"v_mul_f32 v21, {l}, v25"); E("v_exp_f32 v20, v20"); E("v_fract_f32 v21, v21")
        E("s_nop 0"); E(f"v_cos_f32 v{d}, v21"); E(f"v_sin_f32 v{d+1}, v21"); E("s_nop 0")
        E(f"v_mul_f32 v{d}, v{d}, v20"); E(f"v_mul_f32 v{d+1}, v{d+1}, v20")
    def cmul(d, x, y):
        E(f"v_pk_mul_f32 v[22:23], {vr(x,2)}, {vr(y,2)} op_sel:[0,0] op_sel_hi:[1,0]")
        E(f"v_pk_fma_f32 {vr(d,2)}, {vr(x,2)}, {vr(y,2)}, v[22:23] op_sel:[1,1,0] op_sel_hi:[0,1,1] neg_lo:[1,0,0]")
    tmp = [0]
    def put(row, x, neg=False):
        t = 104 + (tmp[0] % 8); tmp[0] += 1
        E(f"v_cvt_pk_bf16_f32 v{t}, v{x}, {'-' if neg else ''}v{x+1}"); E(f"ds_write_b32 v73, v{t} offset:{RS*row}")
    cexp(32, "0x43000000")
    E("s_cmp_lt_u32 s29, 2"); E("s_cbranch_scc1 C_H0")
    cexp(34, "4.0")
    E("v_mov_b32 v36, 0x3f80"); E("ds_write_b32 v73, v36")
    put(1, 32); put(16, 34)
    cur = 32
    for i in range(1, 17):
        if i >= 2:
            nxt = 36 + 2*(i & 1); cmul(nxt, cur, 32); cur = nxt; put(i if i < 16 else 40, cur)
        if i < 8:
            cmul(40, cur, 34); put(16 + 4*(i & 3) + (i >> 2), 40)
    E("s_branch C_HJ")
    LBL("C_H0")
    cexp(34, "0x41000000"); cexp(42, "1.0")
    put(41, 26, True); cur = 26
    for j in range(1, 16):
        nxt = 36 + 2*(j & 1); cmul(nxt, cur, 34); cur = nxt; put(41+j, cur, True)
        if j == 1: cmul(44, 42, 42)
        if j == 2: cmul(46, 44, 42); cmul(48, 44, 44)
        if j == 3: cmul(50, 48, 42); cmul(52, 48, 44); cmul(54, 48, 46)
        if j == 4: cmul(56, 32, 32)
        if j == 5: cmul(58, 56, 32)
    for r in range(4):
        put(32+r, 42+4*r); cmul(60, 42+4*r, 32); put(36+r, 60)
    for r, e in ((2, 44), (3, 52)):
        put(16+r, e)
        for g, t in ((1, 32), (2, 56), (3, 58)):
            cmul(60, e, t); put(16+4*g+r, 60)
    LBL("C_HJ")
    E("s_waitcnt lgkmcnt(0)")
    E("s_and_b32 s28, s16, 1"); E("s_lshl_b32 s28, s28, 4"); E("s_lshr_b32 s27, s27, s28"); E("s_lshl_b32 s27, s27, 16")
    E("s_barrier"); TS(3)
    E(f"v_mul_u32_u24 v73, {RS}, v70"); E("v_lshl_add_u32 v73, v66, 4, v73")
    E(f"s_mul_i32 s30, s29, {16*RS}"); E("v_add_u32 v74, s30, v73")
    if GP: E("s_cmp_eq_u32 s29, 3"); E("s_cbranch_scc1 C_T3")
    else:
        E("s_cmp_eq_u32 s29, 3"); E("s_cbranch_scc0 C_SK")
        E("s_mov_b64 exec, 1"); poll("C", 28, 30)
        E("s_mov_b64 exec, -1"); TS(5); E("s_branch C_T3")
    LBL("C_SK")
    for k in range(8):
        E(f"ds_read_b128 {vr(32+8*k,4)}, v74 offset:{64*k}") if k < 4 else E(f"ds_read_b128 {vr(44+8*k,4)}, v74 offset:{64*k}")
        E(f"ds_read_b128 {vr(36+8*k,4)}, v73 offset:{41*RS+64*k}") if k < 4 else E(f"ds_read_b128 {vr(48+8*k,4)}, v73 offset:{41*RS+64*k}")
    E("v_mul_u32_u24 v28, 36, v70"); E("v_mul_u32_u24 v30, 576, v66"); E("v_add_u32 v30, v30, v28")
    E("v_lshlrev_b32 v31, 2, v66"); E("v_add_u32 v31, 9204, v31"); E("v_add_u32 v31, v31, v28")
    E("v_cmp_lt_u32 vcc, 1, v66"); E("v_mul_u32_u24 v29, 2304, v66"); E("v_add_u32 v29, v29, v28"); E("v_cndmask_b32 v31, v30, v31, vcc")
    E("s_waitcnt lgkmcnt(0)")
    for k in range(8):
        b = 32+8*k if k < 4 else 44+8*k
        E(f"v_mfma_f32_16x16x32_bf16 v[16:19], {vr(b,4)}, {vr(b+4,4)}, " + ("0" if k == 0 else "v[16:19]"))
    E("s_nop 7")
    E("s_cmp_eq_u32 s29, 1"); E("s_cbranch_scc1 C_T1"); E("s_cmp_eq_u32 s29, 2"); E("s_cbranch_scc1 C_T2")
    for r in range(4): E(f"ds_write_b32 v29, v{16+r} offset:{TBL+576*r}")
    E("s_branch C_T3")
    LBL("C_T1")
    for r in range(4): E(f"ds_write_b32 v30, v{16+r} offset:{TBL+4*[4,580,2,6][r]}")
    E("s_branch C_T3")
    LBL("C_T2")
    for r in range(4): E(f"ds_write_b32 v31, v{16+r} offset:{TBL+4*(1+2*r)}")
    LBL("C_T3")
    E("s_waitcnt lgkmcnt(0)"); E("s_barrier"); TS(4)
    def xld():
        E("buffer_load_dwordx4 v[8:11], v1, s[4:7], s19 offen sc1"); E("buffer_load_dwordx4 v[12:15], v1, s[4:7], s19 offen offset:16 sc1")
        for i, sr in enumerate((17, 22, 23)): E(f"buffer_load_dword v{28+i}, v4, s[4:7], s{sr} offen sc1")
    if not GP: xld()
    for x in range(15): E(f"ds_read_b32 v{32+x}, v{GA+x} offset:{TBL}")
    E("ds_write_b128 v3, v[4:7] offset:4096")
    E("s_waitcnt lgkmcnt(1)")
    for p in range(2):
        for a in range(2):
            for k in range(a, 6+a): E(f"v_cvt_pk_bf16_f32 v{76+8*(2*p+a)+k-a}, v{32+2*k+p}, v{33+2*k+p}")
    for c in range(8):
        sft = 7-c; p = sft & 1; st = sft >> 1; a = st & 1
        E(f"ds_write_b128 v2, {vr(76+8*(2*p+a)+st-a,4)} offset:{CS*c}")
    if GP:
        E("s_cmp_eq_u32 s29, 3"); E("s_cbranch_scc0 C_G1")
        E("s_mov_b64 exec, 1"); poll("C", 28, 30)
        E("s_mov_b64 exec, -1"); TS(5)
        LBL("C_G1")
        E("s_waitcnt lgkmcnt(0)"); E("s_barrier")
        xld()
        for q in range(8): E(f"ds_read_b128 {vr(76+4*q,4)}, v68 offset:{64+(7-q)*512}")
    E("s_waitcnt vmcnt(0)")
    E("v_add_f32 v72, 1.0, v29"); rnd(72, 72); E("v_readfirstlane_b32 s26, v30")
    for e in range(8): lo(16+e, 8+e)
    for e in range(8): E(f"v_mul_f32 v{16+e}, v{16+e}, v72")
    for e in range(0, 8, 2):
        E(f"v_cvt_pk_bf16_f32 v24, v{16+e}, v{17+e}"); lo(16+e, 24); hi(17+e, 24)
    for e in range(8): E(f"v_add_f32 v{16+e}, v28, v{16+e}")
    for e in range(0, 8, 2): E(f"v_cvt_pk_bf16_f32 v{24+e//2}, v{16+e}, v{17+e}")
    E(f"ds_write_b128 v2, v[24:27] offset:{U+480}")
    E("s_waitcnt lgkmcnt(0)"); E("s_barrier")
    TS(1)
    T0, B0, AC = 76, 108, 32
    for s in range(2):
        o = 64*(1-s)
        for q in range(8):
            if not (GP and s == 0): E(f"ds_read_b128 {vr(T0+4*q,4)}, v68 offset:{o+(7-q)*512}")
            E(f"ds_read_b128 {vr(B0+4*q,4)}, v69 offset:{o+512*q}")
        done = set()
        for n in range(8):
            E(f"s_waitcnt lgkmcnt({(7-n) if (GP and s == 0) else 2*(7-n)})")
            for q in range(n+1):
                for i in range(n+1):
                    if (q == n or i == n) and q+i <= 7:
                        J = q+i
                        c = "0" if (s == 0 and J not in done) else vr(AC+4*J, 4)
                        done.add(J)
                        E(f"v_mfma_f32_16x16x32_bf16 {vr(AC+4*J,4)}, {vr(T0+4*q,4)}, {vr(B0+4*i,4)}, {c}")
    TS(2); E("s_barrier"); E("s_nop 7")
    for J in range(8): E(f"ds_write_b128 v71, {vr(AC+4*J,4)} offset:{1024*J}")
    E("s_waitcnt lgkmcnt(0)"); E("s_barrier")
    for w in range(4):
        E(f"ds_read_b128 {vr(32+8*w,4)}, v1 offset:{8192*w}"); E(f"ds_read_b128 {vr(36+8*w,4)}, v1 offset:{8192*w+16}")
    for e in range(0, 8, 2): lo(16+e, 24+e//2); hi(17+e, 24+e//2)
    for e in range(8): E(f"v_mul_f32 v{16+e}, s27, v{16+e}")
    def rnd8(b):
        for e in range(0, 8, 2):
            E(f"v_cvt_pk_bf16_f32 v28, v{b+e}, v{b+1+e}"); lo(b+e, 28); hi(b+1+e, 28)
    rnd8(16)
    for e in range(8): hi(8+e, 8+e)
    E("s_waitcnt lgkmcnt(0)")
    for e in range(8):
        E(f"v_add_f32 v{32+e}, v{32+e}, v{40+e}"); E(f"v_add_f32 v{48+e}, v{48+e}, v{56+e}")
    for e in range(8): E(f"v_add_f32 v{32+e}, v{32+e}, v{48+e}")
    rnd8(32)
    for e in range(8): E(f"v_add_f32 v{32+e}, v{32+e}, v{16+e}")
    rnd8(32)
    for e in range(8): E(f"v_mul_f32 v{32+e}, s26, v{32+e}")
    rnd8(32)
    for e in range(8): E(f"v_add_f32 v{32+e}, v{32+e}, v{8+e}")
    for e in range(0, 8, 2): E(f"v_cvt_pk_bf16_f32 v{24+e//2}, v{32+e}, v{33+e}")
    E("s_lshl_b32 s19, s16, 12"); E(f"s_add_u32 s19, s19, {hex(X1T)}")
    E("buffer_store_dwordx4 v[24:27], v2, s[4:7], s19 offen")
    TS(7); E("s_endpgm")
```

```python
from gen2 import *
N1 = int(os.environ.get("N1", "14")); K0 = int(os.environ.get("K0", "24"))
def k_ffn():
    head("ffn_kernel")
    srd(4, 144, WSB); srd(8, 128, 2048*512*2); srd(12, 104, 1024)
    E("s_cmp_ge_u32 s2, 256"); E("s_cbranch_scc1 F_END")
    E("s_and_b32 s16, s2, 7"); E("s_lshl_b32 s16, s16, 2"); E("s_bfe_u32 s17, s2, 0x20003"); E("s_add_u32 s16, s16, s17")
    E("s_lshr_b32 s17, s2, 5")
    E("v_lshrrev_b32 v1, 6, v0"); E("v_and_b32 v2, 63, v0"); E("v_lshlrev_b32 v8, 4, v2")
    E("v_readfirstlane_b32 s18, v1")
    E("v_and_b32 v3, 7, v0"); E("v_lshrrev_b32 v4, 3, v0")
    E("v_lshlrev_b32 v5, 12, v4"); E("v_lshl_add_u32 v5, v3, 4, v5")
    E("s_lshl_b32 s19, s16, 7"); E(f"s_add_u32 s19, s19, {hex(X1T)}")
    E("s_mul_i32 s32, s18, 14"); E("s_mul_i32 s33, s17, 224"); E("s_add_u32 s33, s33, s32"); E("s_lshl_b32 s33, s33, 10")
    E(f"s_add_u32 s34, s33, {hex(W2P)}"); E(f"s_add_u32 s35, s34, {112*1024}")
    E("s_mul_i32 s33, s16, 224"); E("s_add_u32 s33, s33, s32"); E("s_lshl_b32 s33, s33, 10")
    E(f"s_add_u32 s36, s33, {hex(HP)}"); E(f"s_add_u32 s37, s36, {112*1024}")
    E("s_waitcnt lgkmcnt(0)"); TS(0)
    E("v_lshlrev_b32 v6, 6, v4"); E("v_and_b32 v7, 3, v3"); E("v_lshl_add_u32 v6, v7, 4, v6")
    E("v_lshrrev_b32 v7, 2, v3"); E("v_lshl_add_u32 v6, v7, 15, v6")
    E("s_mul_i32 s20, s17, 7"); E("s_add_u32 s20, s20, s18")
    def w2ld(k):
        ks, dt = k >> 1, k & 1
        E(f"buffer_load_dwordx4 {vr(48+4*k,4)}, v8, s[4:7], s{34+dt} offen offset:{1024*(ks&3)}")
        if dt == 1 and ks & 3 == 3: E("s_add_u32 s34, s34, 4096"); E("s_add_u32 s35, s35, 4096")
    E("s_cmp_eq_u32 s18, 7"); E("s_cbranch_scc1 F_ST")
    E("s_lshl_b32 s21, s20, 15"); E(f"s_add_u32 s21, s21, {hex(W1P)}")
    VM = Cnt("vm", 63); LG = Cnt("lg", 15)
    def tld(i):
        E(f"buffer_load_dwordx4 {vr(176+4*i,4)}, v5, s[4:7], s19 offen"); E("s_add_u32 s19, s19, 0x40000"); VM.add(("T", i))
    def twr(i):
        E(f"s_waitcnt vmcnt({VM.need(('T', i))})"); E(f"ds_write_b128 v6, {vr(176+4*i,4)} offset:{4096*i}"); LG.add(("W", i))
    for c in range(4):
        tld(2*c); tld(2*c+1)
        for k in range(8*c, 8*c+8):
            E(f"buffer_load_dwordx4 {vr(48+4*k,4)}, v8, s[4:7], s21 offen offset:{1024*(k&3)}"); VM.add(("A", k))
            if k & 3 == 3: E("s_add_u32 s21, s21, 4096")
    E("v_lshrrev_b32 v9, 5, v2"); E("v_lshlrev_b32 v9, 4, v9")
    E("s_lshl_b32 s21, s20, 7"); E(f"s_add_u32 s22, s21, {hex(S2)}"); E(f"s_add_u32 s21, s21, {hex(S1)}")
    E("v_lshrrev_b32 v10, 5, v2"); E("v_lshlrev_b32 v10, 9, v10"); E("v_bfe_u32 v11, v2, 2, 2"); E("v_lshl_add_u32 v10, v11, 6, v10")
    E("v_bfe_u32 v11, v2, 4, 1"); E("v_lshl_add_u32 v10, v11, 5, v10"); E("v_and_b32 v11, 3, v2"); E("v_lshl_add_u32 v10, v11, 3, v10")
    twr(0); twr(1)
    BF = 208
    def rdB(k):
        b = BF + 8*(k % 4)
        for th in range(2):
            for h in range(2):
                E(f"ds_read_b64_tr_b16 {vr(b+4*th+2*h,2)}, v10 offset:{32768*th+1024*k+256*h}"); LG.add(("B", k))
    for c in range(4):
        E("s_waitcnt lgkmcnt(0)"); E("s_barrier")
        if c == 3:
            for a in range(4):
                E(f"buffer_load_dwordx4 {vr(176+4*a,4)}, v9, s[4:7], s21 offen offset:{32*a}"); VM.add("S")
                E(f"buffer_load_dwordx4 {vr(192+4*a,4)}, v9, s[4:7], s22 offen offset:{32*a}"); VM.add("S")
        for k in range(8*c, 8*c+3): rdB(k)
        for k in range(8*c, 8*c+8):
            if k+3 < 8*c+8: rdB(k+3)
            E(f"s_waitcnt vmcnt({VM.need(('A', k))}) lgkmcnt({LG.need(('B', k))})")
            for th in range(2):
                cc = "0" if k == 0 else vr(16+16*th, 16)
                E(f"v_mfma_f32_32x32x16_bf16 {vr(16+16*th,16)}, {vr(48+4*k,4)}, {vr(BF+8*(k%4)+4*th,4)}, {cc}")
            if K0 <= k < K0+N1//2:
                for kk in (2*(k-K0), 2*(k-K0)+1): assert kk < k; w2ld(kk); VM.add("W2")
            if k % 8 == 5 and c < 3: twr(2*c+2); twr(2*c+3)
    SW = VM.need("S")
    E("s_barrier")
    E("v_and_b32 v11, 31, v2"); E("v_lshlrev_b32 v11, 3, v11"); E("v_add_u32 v11, 0x10000, v11")
    E("ds_read_b64 v[12:13], v11"); E("ds_read_b64 v[14:15], v11 offset:256")
    E("s_mul_i32 s21, s16, 224"); E("s_lshl_b32 s22, s20, 1"); E("s_add_u32 s21, s21, s22"); E("s_lshl_b32 s21, s21, 10")
    E(f"s_add_u32 s21, s21, {hex(HP)}"); E(f"s_add_u32 s22, s21, {112*1024}")
    E(f"s_waitcnt vmcnt({SW}) lgkmcnt(0)"); E("s_nop 4")
    for th in range(2):
        a = 16+16*th
        for r in range(16): E(f"v_fma_f32 v{a+r}, -v{12+2*th}, v{176+r}, v{a+r}")
        for r in range(16): E(f"v_fma_f32 v{a+r}, v{a+r}, v{13+2*th}, v{192+r}")
        for r in range(16): E(f"v_max_f32 v{a+r}, 0, v{a+r}")
        for r in range(16): E(f"v_mul_f32 v{a+r}, v{a+r}, v{a+r}")
        for r in range(8): E(f"v_cvt_pk_bf16_f32 v{160+8*th+r}, v{a+2*r}, v{a+2*r+1}")
        E(f"buffer_store_dwordx4 {vr(160+8*th,4)}, v8, s[4:7], s{21+th} offen sc1")
        E(f"buffer_store_dwordx4 {vr(164+8*th,4)}, v8, s[4:7], s{21+th} offen offset:1024 sc1")
    for kk in range(N1, 28): w2ld(kk)
    E(f"s_waitcnt vmcnt({28-N1})"); E("s_barrier"); TS(2)
    LBL("F_P2")
    E("s_barrier")
    LBL("F_GO"); TS(3)
    ring = [16, 24, 32, 40, 160, 168, 240] + ([] if DBG else [248])
    RD = len(ring)
    def hld(k):
        for th in range(2): E(f"buffer_load_dwordx4 {vr(ring[k%RD]+4*th,4)}, v8, s[4:7], s{36+th} offen offset:{1024*(k&3)} sc1")
        if k & 3 == 3: E("s_add_u32 s36, s36, 4096"); E("s_add_u32 s37, s37, 4096")
    for k in range(RD): hld(k)
    E("s_lshl_b32 s26, s17, 6"); E("s_lshl_b32 s27, s16, 6")
    E("v_and_b32 v4, 7, v0"); E("v_lshrrev_b32 v5, 3, v0")
    E("v_lshlrev_b32 v6, 15, v4"); E("v_lshl_add_u32 v6, v5, 1, v6")
    E("s_lshl_b32 s28, s26, 12"); E("s_lshl_b32 s29, s27, 1"); E("s_add_u32 s28, s28, s29"); E(f"s_add_u32 s28, s28, {hex(X1T)}")
    E("v_lshlrev_b32 v7, 5, v4"); E("s_lshl_b32 s29, s26, 2"); E(f"s_add_u32 s29, s29, {MOD+5*512*4}")
    E("v_lshlrev_b32 v3, 4, v4"); E("s_lshl_b32 s31, s26, 1")
    issued = RD; extra = 0
    for k in range(14):
        younger = 2*(issued-1-k) + extra
        E(f"s_waitcnt vmcnt({younger})")
        for dt in range(2):
            for th in range(2):
                a = 176+16*(2*dt+th)
                E(f"v_mfma_f32_32x32x16_bf16 {vr(a,16)}, {vr(48+8*k+4*dt,4)}, {vr(ring[k%RD]+4*th,4)}, " + ("0" if k == 0 else vr(a, 16)))
        if issued < 14: hld(issued); issued += 1
        elif extra == 0:
            for r in range(8):
                E(f"buffer_load_ushort v{48+r}, v6, s[4:7], s28 offen"); E("s_add_u32 s28, s28, 4096")
            for a in range(2): E(f"buffer_load_dwordx4 {vr(56+4*a,4)}, v7, s[4:7], s29 offen offset:{16*a}")
            E("buffer_load_dwordx4 v[64:67], v3, s[12:15], s31 offen")
            extra = 11
    TS(4)
    E("v_mul_u32_u24 v1, 16896, v1"); E("v_add_u32 v1, v1, v8"); E("s_nop 7"); E("s_nop 3")
    for dt in range(2):
        for th in range(2):
            for a in range(4): E(f"ds_write_b128 v1, {vr(176+16*(2*dt+th)+4*a,4)} offset:{8448*th+1056*(4*dt+a)}")
    E("v_lshrrev_b32 v1, 5, v5"); E("v_mul_u32_u24 v1, 8448, v1"); E("v_mul_u32_u24 v9, 1056, v4"); E("v_add_u32 v1, v1, v9")
    E("v_and_b32 v9, 31, v5"); E("v_lshl_add_u32 v1, v9, 4, v1"); E(f"v_add_u32 v9, {3*16896}, v1"); E(f"v_add_u32 v10, {6*16896}, v1")
    E("s_waitcnt lgkmcnt(0)"); E("s_barrier")
    for w in range(8):
        for a in range(2): E(f"ds_read_b128 {vr(80+8*w+4*a,4)}, v{[1,9,10][w//3]} offset:{16896*(w%3)+512*a}")
    E("v_lshlrev_b32 v6, 10, v5"); E("v_lshl_add_u32 v6, v4, 4, v6")
    E("s_lshl_b32 s28, s27, 10"); E("s_lshl_b32 s29, s26, 1"); E("s_add_u32 s28, s28, s29")
    E("s_waitcnt vmcnt(0)")
    for r in range(8): lo(48+r, 48+r)
    for a in range(4): lo(68+2*a, 64+a); hi(69+2*a, 64+a)
    E("s_waitcnt lgkmcnt(0)")
    for st in (32, 16, 8):
        for r in range(st): E(f"v_add_f32 v{80+r}, v{80+r}, v{80+st+r}")
    def rn8(b):
        for e in range(0, 8, 2):
            E(f"v_cvt_pk_bf16_f32 v24, v{b+e}, v{b+1+e}"); lo(b+e, 24); hi(b+1+e, 24)
    rn8(80)
    for r in range(8): E(f"v_add_f32 v{80+r}, v{80+r}, v{68+r}")
    rn8(80)
    for r in range(8): E(f"v_mul_f32 v{80+r}, v{80+r}, v{56+r}")
    rn8(80)
    for r in range(8): E(f"v_add_f32 v{80+r}, v{80+r}, v{48+r}")
    for e in range(4): E(f"v_cvt_pk_bf16_f32 v{24+e}, v{80+2*e}, v{81+2*e}")
    E("buffer_store_dwordx4 v[24:27], v6, s[8:11], s28 offen")
    TS(7)
    LBL("F_END")
    E("s_endpgm")
    LBL("F_ST")
    VM.l = []; LG.l = []
    E("s_setprio 2")
    for i in range(8): tld(i)
    for k in range(28): w2ld(k); VM.add("W2")
    E("v_lshrrev_b32 v10, 2, v2"); E("v_lshlrev_b32 v10, 6, v10"); E("v_and_b32 v11, 3, v2"); E("v_lshl_add_u32 v10, v11, 3, v10")
    for i in range(4): E(f"v_mov_b32 v{12+i}, 0x3f803f80")
    twr(0); twr(1)
    SR = [160, 208, 224]
    def rdS(k):
        b = SR[k % 3]
        for tg in range(4):
            for h in range(2):
                E(f"ds_read_b64_tr_b16 {vr(b+4*tg+2*h,2)}, v10 offset:{32768*(tg>>1)+32*(tg&1)+2048*k+1024*h}"); LG.add(("B", k))
    for c in range(4):
        E("s_waitcnt lgkmcnt(0)"); E("s_barrier")
        rdS(4*c); rdS(4*c+1)
        for k in range(4*c, 4*c+4):
            E(f"s_waitcnt lgkmcnt({LG.need(('B', k))})")
            if k+2 < 4*c+4: rdS(k+2)
            for tg in range(4):
                f = vr(SR[k % 3]+4*tg, 4)
                E(f"v_mfma_f32_16x16x32_bf16 {vr(16+4*tg,4)}, {f}, {f}, " + ("0" if k == 0 else vr(16+4*tg, 4)))
                E(f"v_mfma_f32_16x16x32_bf16 {vr(32+4*tg,4)}, v[12:15], {f}, " + ("0" if k == 0 else vr(32+4*tg, 4)))
            if k % 4 == 2 and c < 3: twr(2*c+2); twr(2*c+3)
    E("v_and_b32 v11, 3, v2")
    E("v_cmp_eq_u32 s[24:25], 1, v11"); E("v_cmp_eq_u32 s[26:27], 2, v11"); E("v_cmp_eq_u32 s[28:29], 3, v11")
    E("v_bfe_u32 v3, v2, 2, 2"); E("v_lshrrev_b32 v4, 4, v2"); E("v_cmp_eq_u32 vcc, v3, v4")
    E("v_and_b32 v5, 15, v2"); E("v_lshlrev_b32 v5, 3, v5"); E("v_add_u32 v5, 0x10000, v5"); E("s_nop 7")
    for tg in range(4):
        q = 16+4*tg; m = 32+4*tg
        E(f"v_cndmask_b32 v{q}, v{q}, v{q+1}, s[24:25]"); E(f"v_cndmask_b32 v{q}, v{q}, v{q+2}, s[26:27]"); E(f"v_cndmask_b32 v{q}, v{q}, v{q+3}, s[28:29]")
        E(f"v_mul_f32 v{m}, 0x3b000000, v{m}"); E(f"v_mul_f32 v{q}, 0x3b000000, v{q}")
        E(f"v_fma_f32 v{q}, -v{m}, v{m}, v{q}"); E(f"v_max_f32 v{q}, 0, v{q}")
        rnd(q, q); rnd(m, m)
        E(f"v_add_f32 v{q}, 0x3727c5ac, v{q}"); rnd(q, q)
        E(f"v_sqrt_f32 v{q}, v{q}"); E("s_nop 0"); rnd(q, q)
        E(f"v_rcp_f32 v{m+1}, v{q}")
    E("s_and_saveexec_b64 s[30:31], vcc")
    for tg in range(4): E(f"ds_write_b64 v5, {vr(32+4*tg,2)} offset:{128*tg}")
    E("s_mov_b64 exec, s[30:31]")
    E("s_waitcnt lgkmcnt(0)"); TS(1); E("s_barrier")
    E("v_and_b32 v9, 7, v2"); E("v_lshlrev_b32 v9, 7, v9"); E("v_mov_b32 v10, 1"); E("v_mov_b32 v12, 0")
    E("s_lshl_b32 s21, s16, 10"); E(f"s_add_u32 s21, s21, {hex(FLG)}")
    E("s_lshl_b32 s22, s17, 7"); E("s_add_u32 s22, s22, s21")
    E("s_mov_b32 s38, 0x40000")
    E("s_barrier")
    E("s_mov_b64 exec, 1")
    E("buffer_store_dword v10, v12, s[4:7], s22 offen sc1")
    E("s_mov_b64 exec, -1")
    LBL("F_POLL")
    E("buffer_load_dword v11, v9, s[4:7], s21 offen sc1")
    E("s_waitcnt vmcnt(0)")
    E("v_cmp_ne_u32 vcc, 1, v11")
    E("s_cbranch_vccz F_PD")
    E("s_sleep 1"); E("s_sub_u32 s38, s38, 1"); E("s_cmp_lg_u32 s38, 0"); E("s_cbranch_scc1 F_POLL")
    LBL("F_PD")
    E("s_setprio 0"); E("s_branch F_P2")

def k_pc(): k_prep(); k_conv()
KS = [("pc_kernel", B_CV+512, 256, 8*CS+4608+9792, 140, k_pc),
      ("ffn_kernel", 256, 512, 135168, 256, k_ffn)]
def build(path):
    ref = open("adaLN_cond__ssm_conv_s4__dense_activation_squared_relu__prompt.s.ref").read().split("\n")
    hdr = [l for l in ref if l.startswith(";") and "@launch" not in l]
    for n, g, b, lds, vg, f in KS: hdr.append(f"; @launch kernel={n} grid=({g},1,1) block=({b},1,1) lds={lds}")
    L.clear()
    for i, (n, g, b, lds, vg, f) in enumerate(KS): KIDX[0] = i; TSV[0] = 252 if vg > 250 else vg; f()
    out = hdr + ['.amdgcn_target "amdgcn-amd-amdhsa--gfx950"', ".text"] + L + ['.section .rodata,"a"']
    for n, g, b, lds, vg, f in KS:
        if DBG and vg < 250: vg += 4
        out += [".p2align 6", f".amdhsa_kernel {n}", f"  .amdhsa_next_free_vgpr {vg}", "  .amdhsa_next_free_sgpr 64",
                f"  .amdhsa_accum_offset {vg}", "  .amdhsa_group_segment_fixed_size 0", "  .amdhsa_kernarg_size 152",
                "  .amdhsa_user_sgpr_count 2", "  .amdhsa_user_sgpr_kernarg_segment_ptr 1", "  .amdhsa_system_sgpr_workgroup_id_x 1", ".end_amdhsa_kernel"]
    open(path, "w").write("\n".join(out) + "\n")
if __name__ == "__main__":
    import sys
    build(sys.argv[1] if len(sys.argv) > 1 else "adaLN_cond__ssm_conv_s4__dense_activation_squared_relu__prompt.s")
```

```python
from gen2 import *
N1 = int(os.environ.get("N1", "26")); K0 = int(os.environ.get("K0", "14"))
RT = int(os.environ.get("RT", "2")); SC = int(os.environ.get("SC", "3")); S2R = 192 if SC == 3 else 240
def k_ffn():
    head("ffn_kernel")
    srd(4, 144, WSB); srd(8, 128, 2048*512*2); srd(12, 104, 1024)
    E("s_cmp_ge_u32 s2, 256"); E("s_cbranch_scc1 F_END")
    E("s_and_b32 s16, s2, 7"); E("s_lshl_b32 s16, s16, 2"); E("s_bfe_u32 s17, s2, 0x20003"); E("s_add_u32 s16, s16, s17")
    E("s_lshr_b32 s17, s2, 5")
    E("v_lshrrev_b32 v1, 6, v0"); E("v_and_b32 v2, 63, v0"); E("v_lshlrev_b32 v8, 4, v2")
    E("v_readfirstlane_b32 s18, v1")
    E("v_and_b32 v3, 7, v0"); E("v_lshrrev_b32 v4, 3, v0")
    E("v_lshlrev_b32 v5, 12, v4"); E("v_lshl_add_u32 v5, v3, 4, v5")
    E("s_lshl_b32 s19, s16, 7"); E(f"s_add_u32 s19, s19, {hex(X1T)}")
    E("s_mul_i32 s32, s18, 14"); E("s_mul_i32 s33, s17, 224"); E("s_add_u32 s33, s33, s32"); E("s_lshl_b32 s33, s33, 10")
    E(f"s_add_u32 s34, s33, {hex(W2P)}"); E(f"s_add_u32 s35, s34, {112*1024}")
    E("s_mul_i32 s33, s16, 224"); E("s_add_u32 s33, s33, s32"); E("s_lshl_b32 s33, s33, 10")
    E(f"s_add_u32 s36, s33, {hex(HP)}"); E(f"s_add_u32 s37, s36, {112*1024}")
    E("s_waitcnt lgkmcnt(0)"); TS(0)
    E("v_lshlrev_b32 v6, 6, v4"); E("v_and_b32 v7, 3, v3"); E("v_lshl_add_u32 v6, v7, 4, v6")
    E("v_lshrrev_b32 v7, 2, v3"); E("v_lshl_add_u32 v6, v7, 15, v6")
    E("s_mul_i32 s20, s17, 7"); E("s_add_u32 s20, s20, s18")
    def w2ld(k):
        ks, dt = k >> 1, k & 1
        E(f"buffer_load_dwordx4 {vr(48+4*k,4)}, v8, s[4:7], s{34+dt} offen offset:{1024*(ks&3)}")
        if dt == 1 and ks & 3 == 3: E("s_add_u32 s34, s34, 4096"); E("s_add_u32 s35, s35, 4096")
    E("s_cmp_eq_u32 s18, 7"); E("s_cbranch_scc1 F_ST")
    E("s_lshl_b32 s21, s20, 15"); E(f"s_add_u32 s21, s21, {hex(W1P)}")
    VM = Cnt("vm", 63); LG = Cnt("lg", 15)
    def tld(i):
        E(f"buffer_load_dwordx4 {vr(176+4*i,4)}, v5, s[4:7], s19 offen"); E("s_add_u32 s19, s19, 0x40000"); VM.add(("T", i))
    def twr(i):
        E(f"s_waitcnt vmcnt({VM.need(('T', i))})"); E(f"ds_write_b128 v6, {vr(176+4*i,4)} offset:{4096*i}"); LG.add(("W", i))
    for c in range(4):
        tld(2*c); tld(2*c+1)
        for k in range(8*c, 8*c+8):
            E(f"buffer_load_dwordx4 {vr(48+4*k,4)}, v8, s[4:7], s21 offen offset:{1024*(k&3)}"); VM.add(("A", k))
            if k & 3 == 3: E("s_add_u32 s21, s21, 4096")
    E("v_lshrrev_b32 v9, 5, v2"); E("v_lshlrev_b32 v9, 4, v9")
    E("s_lshl_b32 s21, s20, 7"); E(f"s_add_u32 s22, s21, {hex(S2)}"); E(f"s_add_u32 s21, s21, {hex(S1)}")
    E("v_lshrrev_b32 v10, 5, v2"); E("v_lshlrev_b32 v10, 9, v10"); E("v_bfe_u32 v11, v2, 2, 2"); E("v_lshl_add_u32 v10, v11, 6, v10")
    E("v_bfe_u32 v11, v2, 4, 1"); E("v_lshl_add_u32 v10, v11, 5, v10"); E("v_and_b32 v11, 3, v2"); E("v_lshl_add_u32 v10, v11, 3, v10")
    twr(0); twr(1)
    BF = 208
    def rdB(k):
        b = BF + 8*(k % 4)
        for th in range(2):
            for h in range(2):
                E(f"ds_read_b64_tr_b16 {vr(b+4*th+2*h,2)}, v10 offset:{32768*th+1024*k+256*h}"); LG.add(("B", k))
    for c in range(4):
        E("s_waitcnt lgkmcnt(0)"); E("s_barrier")
        if c == SC:
            for a in range(4):
                E(f"buffer_load_dwordx4 {vr(176+4*a,4)}, v9, s[4:7], s21 offen offset:{32*a}"); VM.add("S")
                E(f"buffer_load_dwordx4 {vr(S2R+4*a,4)}, v9, s[4:7], s22 offen offset:{32*a}"); VM.add("S")
        for k in range(8*c, 8*c+3): rdB(k)
        for k in range(8*c, 8*c+8):
            if k+3 < 8*c+8: rdB(k+3)
            E(f"s_waitcnt vmcnt({VM.need(('A', k))}) lgkmcnt({LG.need(('B', k))})")
            for th in range(2):
                cc = "0" if k == 0 else vr(16+16*th, 16)
                E(f"v_mfma_f32_32x32x16_bf16 {vr(16+16*th,16)}, {vr(48+4*k,4)}, {vr(BF+8*(k%4)+4*th,4)}, {cc}")
            if K0 <= k < K0+N1//RT:
                for kk in range(RT*(k-K0), RT*(k-K0+1)): assert kk < k; w2ld(kk); VM.add("W2")
            if k % 8 == 5 and c < 3: twr(2*c+2); twr(2*c+3)
    SW = VM.need("S")
    E("s_barrier")
    E("v_and_b32 v11, 31, v2"); E("v_lshlrev_b32 v11, 3, v11"); E("v_add_u32 v11, 0x10000, v11")
    E("ds_read_b64 v[12:13], v11"); E("ds_read_b64 v[14:15], v11 offset:256")
    E("s_mul_i32 s21, s16, 224"); E("s_lshl_b32 s22, s20, 1"); E("s_add_u32 s21, s21, s22"); E("s_lshl_b32 s21, s21, 10")
    E(f"s_add_u32 s21, s21, {hex(HP)}"); E(f"s_add_u32 s22, s21, {112*1024}")
    E(f"s_waitcnt vmcnt({SW}) lgkmcnt(0)"); E("s_nop 4")
    for th in range(2):
        a = 16+16*th
        for r in range(16): E(f"v_fma_f32 v{a+r}, -v{12+2*th}, v{176+r}, v{a+r}")
        for r in range(16): E(f"v_fma_f32 v{a+r}, v{a+r}, v{13+2*th}, v{S2R+r}")
        for r in range(16): E(f"v_max_f32 v{a+r}, 0, v{a+r}")
        for r in range(16): E(f"v_mul_f32 v{a+r}, v{a+r}, v{a+r}")
        for r in range(8): E(f"v_cvt_pk_bf16_f32 v{160+8*th+r}, v{a+2*r}, v{a+2*r+1}")
        E(f"buffer_store_dwordx4 {vr(160+8*th,4)}, v8, s[4:7], s{21+th} offen sc1")
        E(f"buffer_store_dwordx4 {vr(164+8*th,4)}, v8, s[4:7], s{21+th} offen offset:1024 sc1")
    for kk in range(N1, 28): w2ld(kk)
    E(f"s_waitcnt vmcnt({28-N1})"); E("s_barrier"); TS(2)
    LBL("F_P2")
    E("s_barrier")
    LBL("F_GO"); TS(3)
    ring = [16, 24, 32, 40, 160, 168, 240] + ([] if DBG else [248])
    RD = len(ring)
    def hld(k):
        for th in range(2): E(f"buffer_load_dwordx4 {vr(ring[k%RD]+4*th,4)}, v8, s[4:7], s{36+th} offen offset:{1024*(k&3)} sc1")
        if k & 3 == 3: E("s_add_u32 s36, s36, 4096"); E("s_add_u32 s37, s37, 4096")
    for k in range(RD): hld(k)
    E("s_lshl_b32 s26, s17, 6"); E("s_lshl_b32 s27, s16, 6")
    E("v_and_b32 v4, 7, v0"); E("v_lshrrev_b32 v5, 3, v0")
    E("v_lshlrev_b32 v6, 15, v4"); E("v_lshl_add_u32 v6, v5, 1, v6")
    E("s_lshl_b32 s28, s26, 12"); E("s_lshl_b32 s29, s27, 1"); E("s_add_u32 s28, s28, s29"); E(f"s_add_u32 s28, s28, {hex(X1T)}")
    E("v_lshlrev_b32 v7, 5, v4"); E("s_lshl_b32 s29, s26, 2"); E(f"s_add_u32 s29, s29, {MOD+5*512*4}")
    E("v_lshlrev_b32 v3, 4, v4"); E("s_lshl_b32 s31, s26, 1")
    issued = RD; extra = 0
    for k in range(14):
        younger = 2*(issued-1-k) + extra
        E(f"s_waitcnt vmcnt({younger})")
        for dt in range(2):
            for th in range(2):
                a = 176+16*(2*dt+th)
                E(f"v_mfma_f32_32x32x16_bf16 {vr(a,16)}, {vr(48+8*k+4*dt,4)}, {vr(ring[k%RD]+4*th,4)}, " + ("0" if k == 0 else vr(a, 16)))
        if issued < 14: hld(issued); issued += 1
        elif extra == 0:
            for r in range(8):
                E(f"buffer_load_ushort v{48+r}, v6, s[4:7], s28 offen"); E("s_add_u32 s28, s28, 4096")
            for a in range(2): E(f"buffer_load_dwordx4 {vr(56+4*a,4)}, v7, s[4:7], s29 offen offset:{16*a}")
            E("buffer_load_dwordx4 v[64:67], v3, s[12:15], s31 offen")
            extra = 11
    TS(4)
    E("v_mul_u32_u24 v1, 16896, v1"); E("v_add_u32 v1, v1, v8"); E("s_nop 7"); E("s_nop 3")
    for dt in range(2):
        for th in range(2):
            for a in range(4): E(f"ds_write_b128 v1, {vr(176+16*(2*dt+th)+4*a,4)} offset:{8448*th+1056*(4*dt+a)}")
    E("v_lshrrev_b32 v1, 5, v5"); E("v_mul_u32_u24 v1, 8448, v1"); E("v_mul_u32_u24 v9, 1056, v4"); E("v_add_u32 v1, v1, v9")
    E("v_and_b32 v9, 31, v5"); E("v_lshl_add_u32 v1, v9, 4, v1"); E(f"v_add_u32 v9, {3*16896}, v1"); E(f"v_add_u32 v10, {6*16896}, v1")
    E("s_waitcnt lgkmcnt(0)"); E("s_barrier")
    for w in range(8):
        for a in range(2): E(f"ds_read_b128 {vr(80+8*w+4*a,4)}, v{[1,9,10][w//3]} offset:{16896*(w%3)+512*a}")
    E("v_lshlrev_b32 v6, 10, v5"); E("v_lshl_add_u32 v6, v4, 4, v6")
    E("s_lshl_b32 s28, s27, 10"); E("s_lshl_b32 s29, s26, 1"); E("s_add_u32 s28, s28, s29")
    E("s_waitcnt vmcnt(0)")
    for r in range(8): lo(48+r, 48+r)
    for a in range(4): lo(68+2*a, 64+a); hi(69+2*a, 64+a)
    E("s_waitcnt lgkmcnt(0)")
    for st in (32, 16, 8):
        for r in range(st): E(f"v_add_f32 v{80+r}, v{80+r}, v{80+st+r}")
    def rn8(b):
        for e in range(0, 8, 2):
            E(f"v_cvt_pk_bf16_f32 v24, v{b+e}, v{b+1+e}"); lo(b+e, 24); hi(b+1+e, 24)
    rn8(80)
    for r in range(8): E(f"v_add_f32 v{80+r}, v{80+r}, v{68+r}")
    rn8(80)
    for r in range(8): E(f"v_mul_f32 v{80+r}, v{80+r}, v{56+r}")
    rn8(80)
    for r in range(8): E(f"v_add_f32 v{80+r}, v{80+r}, v{48+r}")
    for e in range(4): E(f"v_cvt_pk_bf16_f32 v{24+e}, v{80+2*e}, v{81+2*e}")
    E("buffer_store_dwordx4 v[24:27], v6, s[8:11], s28 offen")
    TS(7)
    LBL("F_END")
    E("s_endpgm")
    LBL("F_ST")
    VM.l = []; LG.l = []
    E("s_setprio 2")
    for i in range(8): tld(i)
    for k in range(28): w2ld(k); VM.add("W2")
    E("v_lshrrev_b32 v10, 2, v2"); E("v_lshlrev_b32 v10, 6, v10"); E("v_and_b32 v11, 3, v2"); E("v_lshl_add_u32 v10, v11, 3, v10")
    for i in range(4): E(f"v_mov_b32 v{12+i}, 0x3f803f80")
    twr(0); twr(1)
    SR = [160, 208, 224]
    def rdS(k):
        b = SR[k % 3]
        for tg in range(4):
            for h in range(2):
                E(f"ds_read_b64_tr_b16 {vr(b+4*tg+2*h,2)}, v10 offset:{32768*(tg>>1)+32*(tg&1)+2048*k+1024*h}"); LG.add(("B", k))
    for c in range(4):
        E("s_waitcnt lgkmcnt(0)"); E("s_barrier")
        rdS(4*c); rdS(4*c+1)
        for k in range(4*c, 4*c+4):
            E(f"s_waitcnt lgkmcnt({LG.need(('B', k))})")
            if k+2 < 4*c+4: rdS(k+2)
            for tg in range(4):
                f = vr(SR[k % 3]+4*tg, 4)
                E(f"v_mfma_f32_16x16x32_bf16 {vr(16+4*tg,4)}, {f}, {f}, " + ("0" if k == 0 else vr(16+4*tg, 4)))
                E(f"v_mfma_f32_16x16x32_bf16 {vr(32+4*tg,4)}, v[12:15], {f}, " + ("0" if k == 0 else vr(32+4*tg, 4)))
            if k % 4 == 2 and c < 3: twr(2*c+2); twr(2*c+3)
    E("v_and_b32 v11, 3, v2")
    E("v_cmp_eq_u32 s[24:25], 1, v11"); E("v_cmp_eq_u32 s[26:27], 2, v11"); E("v_cmp_eq_u32 s[28:29], 3, v11")
    E("v_bfe_u32 v3, v2, 2, 2"); E("v_lshrrev_b32 v4, 4, v2"); E("v_cmp_eq_u32 vcc, v3, v4")
    E("v_and_b32 v5, 15, v2"); E("v_lshlrev_b32 v5, 3, v5"); E("v_add_u32 v5, 0x10000, v5"); E("s_nop 7")
    for tg in range(4):
        q = 16+4*tg; m = 32+4*tg
        E(f"v_cndmask_b32 v{q}, v{q}, v{q+1}, s[24:25]"); E(f"v_cndmask_b32 v{q}, v{q}, v{q+2}, s[26:27]"); E(f"v_cndmask_b32 v{q}, v{q}, v{q+3}, s[28:29]")
        E(f"v_mul_f32 v{m}, 0x3b000000, v{m}"); E(f"v_mul_f32 v{q}, 0x3b000000, v{q}")
        E(f"v_fma_f32 v{q}, -v{m}, v{m}, v{q}"); E(f"v_max_f32 v{q}, 0, v{q}")
        rnd(q, q); rnd(m, m)
        E(f"v_add_f32 v{q}, 0x3727c5ac, v{q}"); rnd(q, q)
        E(f"v_sqrt_f32 v{q}, v{q}"); E("s_nop 0"); rnd(q, q)
        E(f"v_rcp_f32 v{m+1}, v{q}")
    E("s_and_saveexec_b64 s[30:31], vcc")
    for tg in range(4): E(f"ds_write_b64 v5, {vr(32+4*tg,2)} offset:{128*tg}")
    E("s_mov_b64 exec, s[30:31]")
    E("s_waitcnt lgkmcnt(0)"); TS(1); E("s_barrier")
    E("v_and_b32 v9, 7, v2"); E("v_lshlrev_b32 v9, 7, v9"); E("v_mov_b32 v10, 1"); E("v_mov_b32 v12, 0")
    E("s_lshl_b32 s21, s16, 10"); E(f"s_add_u32 s21, s21, {hex(FLG)}")
    E("s_lshl_b32 s22, s17, 7"); E("s_add_u32 s22, s22, s21")
    E("s_mov_b32 s38, 0x40000")
    E("s_barrier")
    E("s_mov_b64 exec, 1")
    E("buffer_store_dword v10, v12, s[4:7], s22 offen sc1")
    E("s_mov_b64 exec, -1")
    LBL("F_POLL")
    E("buffer_load_dword v11, v9, s[4:7], s21 offen sc1")
    E("s_waitcnt vmcnt(0)")
    E("v_cmp_ne_u32 vcc, 1, v11")
    E("s_cbranch_vccz F_PD")
    E("s_sleep 1"); E("s_sub_u32 s38, s38, 1"); E("s_cmp_lg_u32 s38, 0"); E("s_cbranch_scc1 F_POLL")
    LBL("F_PD")
    E("s_setprio 0"); E("s_branch F_P2")

def k_pc(): k_prep(); k_conv()
KS = [("pc_kernel", B_CV+512, 256, 8*CS+4608+9792, 168 if T1P else 140, k_pc),
      ("ffn_kernel", 256, 512, 135168, 256, k_ffn)]
def build(path):
    ref = open("adaLN_cond__ssm_conv_s4__dense_activation_squared_relu__prompt.s.ref").read().split("\n")
    hdr = [l for l in ref if l.startswith(";") and "@launch" not in l]
    for n, g, b, lds, vg, f in KS: hdr.append(f"; @launch kernel={n} grid=({g},1,1) block=({b},1,1) lds={lds}")
    L.clear()
    for i, (n, g, b, lds, vg, f) in enumerate(KS): KIDX[0] = i; TSV[0] = 252 if vg > 250 else vg; f()
    out = hdr + ['.amdgcn_target "amdgcn-amd-amdhsa--gfx950"', ".text"] + L + ['.section .rodata,"a"']
    for n, g, b, lds, vg, f in KS:
        if DBG and vg < 250: vg += 4
        out += [".p2align 6", f".amdhsa_kernel {n}", f"  .amdhsa_next_free_vgpr {vg}", "  .amdhsa_next_free_sgpr 64",
                f"  .amdhsa_accum_offset {vg}", "  .amdhsa_group_segment_fixed_size 0", "  .amdhsa_kernarg_size 152",
                "  .amdhsa_user_sgpr_count 2", "  .amdhsa_user_sgpr_kernarg_segment_ptr 1", "  .amdhsa_system_sgpr_workgroup_id_x 1", ".end_amdhsa_kernel"]
    open(path, "w").write("\n".join(out) + "\n")
if __name__ == "__main__":
    import sys
    build(sys.argv[1] if len(sys.argv) > 1 else "adaLN_cond__ssm_conv_s4__dense_activation_squared_relu__prompt.s")
```

```python
L = []
def E(s): L.append("    " + s)
def LBL(s): L.append(s + ":")
def C(s): L.append("    ; " + s)
MOD, S1, S2, XT, KG, X1T, W1P, W2P, HP = 0x0, 0x4000, 0x6000, 0x600000, 0x500000, 0x10000, 0x210000, 0x3D0000, 0x600000
WSB = 0x2000000
FLG = 0x8000
KPAR, KCH = 4160, 8320
def vr(a, n): return f"v[{a}:{a+n-1}]"
def srd(d, karg_off, nbytes):
    E(f"s_load_dwordx2 s[{d}:{d+1}], s[0:1], {karg_off}")
    E(f"s_mov_b32 s{d+2}, {hex(nbytes)}")
    E(f"s_mov_b32 s{d+3}, 0x00020000")
def head(name):
    L.append(f".globl {name}\n.p2align 8\n.type {name},@function\n{name}:")
import os
DBG = int(os.environ.get("DBG", "0"))
KIDX = [0]; TSV = [252]
def TS(slot):
    if not DBG: return
    E("s_memrealtime s[60:61]")
    a = TSV[0]; E(f"v_lshrrev_b32 v{a}, 6, v0"); E(f"v_lshlrev_b32 v{a}, 5, v{a}")
    E("s_lshl_b32 s62, s2, 8"); E(f"s_add_u32 s62, s62, {hex(0x1800000 + KIDX[0]*0x40000 + slot*4)}")
    E("s_waitcnt lgkmcnt(0)"); E(f"v_mov_b32 v{a+1}, s60")
    E(f"buffer_store_dword v{a+1}, v{a}, s[4:7], s62 offen")
def lo(d, s): E(f"v_lshlrev_b32 v{d}, 16, v{s}")
def hi(d, s): E(f"v_and_b32 v{d}, 0xffff0000, v{s}")
def rnd(d, s):
    E(f"v_cvt_pk_bf16_f32 v{d}, v{s}, v{s}"); hi(d, d)
def wavesum(regs):
    steps = ["row_shr:1 row_mask:0xf bank_mask:0xf bound_ctrl:0", "row_shr:2 row_mask:0xf bank_mask:0xf bound_ctrl:0",
             "row_shr:4 row_mask:0xf bank_mask:0xf bound_ctrl:0", "row_shr:8 row_mask:0xf bank_mask:0xf bound_ctrl:0",
             "row_bcast:15 row_mask:0xa bank_mask:0xf", "row_bcast:31 row_mask:0xc bank_mask:0xf"]
    E("s_nop 1")
    for st in steps:
        for r in regs: E(f"v_add_f32_dpp v{r}, v{r}, v{r} {st}")
        if len(regs) < 3: E("s_nop 1")
    E("s_nop 1")

def trans_store(w1):
    E("v_lshrrev_b32 v56, 6, v0"); E("v_and_b32 v57, 63, v0")
    E("v_mul_u32_u24 v58, 9216, v56"); E("v_lshrrev_b32 v59, 3, v57"); E("v_mul_u32_u24 v59, 144, v59"); E("v_add_u32 v58, v58, v59")
    E("v_and_b32 v59, 7, v57"); E("v_lshl_add_u32 v58, v59, 4, v58")
    E("s_waitcnt lgkmcnt(0)")
    for i in range(8): E(f"ds_read_b128 {vr(64+4*i,4)}, v58 offset:{1152*i}")
    if w1:
        E("v_lshlrev_b32 v59, 13, v56"); E("v_lshl_add_u32 v59, v57, 4, v59")
    else:
        E("v_lshrrev_b32 v59, 5, v57"); E("v_mul_u32_u24 v59, 114688, v59"); E("v_lshl_add_u32 v59, v56, 9, v59")
        E("v_and_b32 v57, 31, v57"); E("v_lshl_add_u32 v59, v57, 4, v59")
    for i in range(8):
        E(f"s_waitcnt lgkmcnt({7-i})")
        E(f"buffer_store_dwordx4 {vr(64+4*i,4)}, v59, s[4:7], s17 offen"); E(f"s_add_u32 s17, s17, {1024 if w1 else 229376}")

NM, NL, NP = 48, 128, 56
B_LN, B_PK, B_CV = NM, NM+NL, NM+NL+NP
SL = int(os.environ.get("SL", "0")); PRIO = int(os.environ.get("PRIO", "0"))
PS = int(os.environ.get("PS", "2")); PW = int(os.environ.get("PW", "2"))
def arrive(_):
    E("s_mov_b64 exec, 1"); E("v_mov_b32 v1, 0"); E("v_mov_b32 v2, 1"); E("v_mov_b32 v3, 1")
    E("buffer_atomic_add v2, v1, s[56:59], 0 offen sc0 sc1")
    E("s_waitcnt vmcnt(0)")
    E(f"v_cmp_eq_u32 vcc, {NM+NL-1}, v2")
    E("s_cbranch_vccz P_END")
    E("buffer_store_dword v3, v1, s[56:59], 0 offen offset:128 sc1")
def poll(lab, va, vd):
    E(f"v_mov_b32 v{va}, 0"); E("s_mov_b32 s38, 0x40000")
    LBL(lab+"_POLL")
    E(f"buffer_load_dword v{vd}, v{va}, s[56:59], 0 offen offset:128 sc1")
    E("s_waitcnt vmcnt(0)")
    E(f"v_cmp_ne_u32 vcc, 1, v{vd}")
    E(f"s_cbranch_vccz {lab}_PD")
    E(f"s_sleep {PS if lab == 'C' else PW}"); E("s_sub_u32 s38, s38, 1"); E("s_cmp_lg_u32 s38, 0"); E(f"s_cbranch_scc1 {lab}_POLL")
    LBL(lab+"_PD")
def k_prep():
    head("pc_kernel")
    srd(4, 144, WSB)
    srd(56, 136, 256)
    TS(0)
    E(f"s_cmp_ge_u32 s2, {B_CV+512}"); E("s_cbranch_scc1 P_END")
    E(f"s_cmp_ge_u32 s2, {B_CV}"); E("s_cbranch_scc1 C_CV")
    E(f"s_cmp_ge_u32 s2, {B_PK}"); E("s_cbranch_scc1 P_W2")
    if PRIO: E(f"s_setprio {PRIO}")
    E(f"s_cmp_ge_u32 s2, {B_LN}"); E("s_cbranch_scc1 P_LN")
    srd(8, 120, 512*3072*2); srd(12, 112, 1024)
    E("v_and_b32 v1, 7, v0"); E("v_lshrrev_b32 v2, 3, v0")
    E("v_mul_u32_u24 v3, 98304, v2"); E("v_lshl_add_u32 v3, v1, 4, v3")
    E("s_lshl_b32 s17, s2, 7")
    E("v_lshlrev_b32 v4, 5, v2")
    E("s_waitcnt lgkmcnt(0)")
    E("buffer_load_dwordx4 v[8:11], v4, s[12:15], 0 offen"); E("buffer_load_dwordx4 v[12:15], v4, s[12:15], 0 offen offset:16")
    for i in range(16):
        E(f"buffer_load_dwordx4 {vr(48+4*i,4)}, v3, s[8:11], s17 offen")
        E("s_add_u32 s17, s17, 6144")
    E("v_lshlrev_b32 v5, 7, v0"); E("v_mov_b32 v6, 0"); E(f"s_mov_b32 s18, {hex(FLG)}")
    E("s_waitcnt vmcnt(16)")
    for i in range(8): lo(16+2*i, 8+i); hi(17+2*i, 8+i)
    for i in range(16): E(f"v_mul_f32 v{32+i}, 0xbfb8aa3b, v{16+i}")
    for i in range(16): E(f"v_exp_f32 v{32+i}, v{32+i}")
    for i in range(16): E(f"v_add_f32 v{32+i}, 1.0, v{32+i}")
    for i in range(16): E(f"v_rcp_f32 v{32+i}, v{32+i}")
    for i in range(16): E(f"v_mul_f32 v{16+i}, v{16+i}, v{32+i}")
    for i in range(16): rnd(16+i, 16+i)
    for j in range(8): E(f"v_mov_b32 v{32+j}, 0")
    for i in range(16):
        E(f"s_waitcnt vmcnt({15-i})")
        for j in range(4): lo(40+2*j, 48+4*i+j); hi(41+2*j, 48+4*i+j)
        for j in range(8): E(f"v_fmac_f32 v{32+j}, v{40+j}, v{16+i}")
    E("s_cmp_lg_u32 s2, 0"); E("s_cbranch_scc1 P_NOZ")
    E("buffer_store_dword v6, v5, s[4:7], s18 offen")
    LBL("P_NOZ")
    E("v_lshlrev_b32 v5, 5, v0"); E("v_readfirstlane_b32 s18, v0")
    E("ds_write_b128 v5, v[32:35]"); E("ds_write_b128 v5, v[36:39] offset:16")
    E("s_waitcnt lgkmcnt(0)"); E("s_barrier")
    E("s_cmp_lg_u32 s18, 0"); E("s_cbranch_scc1 P_END")
    E("v_lshlrev_b32 v6, 2, v0")
    for i in range(32): E(f"ds_read_b32 v{48+i}, v6 offset:{256*i}")
    E("s_waitcnt lgkmcnt(0)")
    for st in (16, 8, 4, 2, 1):
        for i in range(st): E(f"v_add_f32 v{48+i}, v{48+i}, v{48+i+st}")
    rnd(48, 48)
    E("s_lshl_b32 s17, s2, 8")
    E(f"buffer_store_dword v48, v6, s[4:7], s17 offen sc1")
    E("s_waitcnt vmcnt(0)")
    TS(7); arrive(0)
    LBL("P_END"); E("s_endpgm")
    LBL("P_LN")
    srd(8, 0, 2048*512*2)
    E(f"s_sub_u32 s16, s2, {B_LN}")
    E("s_and_b32 s17, s16, 7"); E("s_lshl_b32 s17, s17, 1"); E("s_bfe_u32 s18, s16, 0x10003"); E("s_and_b32 s16, s16, 0x70")
    E("s_or_b32 s16, s16, s17"); E("s_or_b32 s16, s16, s18")
    E("v_lshrrev_b32 v1, 6, v0"); E("v_and_b32 v2, 63, v0")
    E("v_lshlrev_b32 v3, 12, v1"); E("v_lshl_add_u32 v3, v2, 4, v3")
    E("s_lshl_b32 s17, s16, 14")
    E("s_waitcnt lgkmcnt(0)")
    for r in range(4): E(f"buffer_load_dwordx4 {vr(8+4*r,4)}, v3, s[8:11], s17 offen offset:{1024*r}")
    for r in range(4):
        E(f"s_waitcnt vmcnt({3-r})")
        for j in range(4): lo(32+8*r+2*j, 8+4*r+j); hi(33+8*r+2*j, 8+4*r+j)
        E(f"v_add_f32 v{24+r}, v{32+8*r}, v{33+8*r}")
        for j in range(2, 8): E(f"v_add_f32 v{24+r}, v{24+r}, v{32+8*r+j}")
    wavesum([24, 25, 26, 27])
    for r in range(4): E(f"v_readlane_b32 s{20+r}, v{24+r}, 63")
    E("s_nop 1")
    for r in range(4): E(f"v_mov_b32 v{24+r}, s{20+r}")
    for r in range(4): E(f"v_mul_f32 v{24+r}, 0x3b000000, v{24+r}")
    for r in range(4):
        E(f"v_mov_b32 v{28+r}, 0")
        for j in range(8):
            E(f"v_sub_f32 v64, v{32+8*r+j}, v{24+r}"); E(f"v_fmac_f32 v{28+r}, v64, v64")
    wavesum([28, 29, 30, 31])
    for r in range(4): E(f"v_readlane_b32 s{20+r}, v{28+r}, 63")
    E("s_nop 1")
    for r in range(4): E(f"v_mov_b32 v{28+r}, s{20+r}")
    for r in range(4): E(f"v_mul_f32 v{28+r}, 0x3b000000, v{28+r}")
    for r in range(4): rnd(28+r, 28+r); rnd(24+r, 24+r)
    for r in range(4): E(f"v_add_f32 v{28+r}, 0x3727c5ac, v{28+r}")
    for r in range(4): rnd(28+r, 28+r)
    for r in range(4): E(f"v_sqrt_f32 v{28+r}, v{28+r}")
    for r in range(4): rnd(28+r, 28+r)
    for r in range(4): E(f"v_rcp_f32 v{28+r}, v{28+r}")
    E("s_nop 0")
    for r in range(4):
        for j in range(0, 8, 2):
            a = 32+8*r+j
            E(f"v_sub_f32 v64, v{a}, v{24+r}"); E(f"v_sub_f32 v65, v{a+1}, v{24+r}")
            E("v_cvt_pk_bf16_f32 v66, v64, v65"); lo(64, 66); hi(65, 66)
            E(f"v_mul_f32 v64, v64, v{28+r}"); E(f"v_mul_f32 v65, v65, v{28+r}")
            E(f"v_cvt_pk_bf16_f32 v{72+4*j+r}, v64, v{a}")
            E(f"v_cvt_pk_bf16_f32 v{72+4*(j+1)+r}, v65, v{a+1}")
    E("v_mul_u32_u24 v4, 528, v2"); E("v_lshl_add_u32 v4, v1, 4, v4")
    for j in range(8): E(f"ds_write_b128 v4, {vr(72+4*j,4)} offset:{64*j}")
    E("s_waitcnt lgkmcnt(0)"); E("s_barrier")
    E("v_and_b32 v5, 3, v0"); E("v_lshrrev_b32 v6, 2, v0")
    E("v_lshrrev_b32 v7, 3, v6"); E("v_mul_u32_u24 v7, 528, v7")
    E("v_and_b32 v4, 7, v6"); E("v_lshl_add_u32 v7, v4, 6, v7"); E("v_lshl_add_u32 v7, v5, 4, v7")
    for i in range(8): E(f"ds_read_b128 {vr(72+4*i,4)}, v7 offset:{528*8*i}")
    E("v_lshlrev_b32 v6, 13, v6"); E("v_lshl_add_u32 v6, v5, 4, v6")
    E("s_lshl_b32 s17, s16, 6"); E(f"s_add_u32 s17, s17, {hex(XT)}")
    for i in range(8):
        E(f"s_waitcnt lgkmcnt({7-i})")
        E(f"buffer_store_dwordx4 {vr(72+4*i,4)}, v6, s[4:7], s17 offen sc1")
        E("s_add_u32 s17, s17, 0x80000")
    E("v_readfirstlane_b32 s18, v0")
    TS(6); E("s_waitcnt vmcnt(0)"); E("s_barrier")
    E("s_cmp_lg_u32 s18, 0"); E("s_cbranch_scc1 P_END")
    TS(7); arrive(0); E("s_endpgm")
    LBL("P_W2")
    srd(8, 96, 1792*512*2)
    E(f"s_sub_u32 s16, s2, {B_PK}")
    E("v_lshrrev_b32 v1, 6, v0"); E("v_and_b32 v2, 63, v0")
    E("v_lshrrev_b32 v3, 1, v1"); E("v_and_b32 v4, 1, v1")
    E("v_lshlrev_b32 v5, 14, v3"); E("v_lshl_add_u32 v5, v4, 12, v5"); E("v_lshl_add_u32 v5, v2, 4, v5")
    E("s_lshl_b32 s17, s16, 15"); E("s_add_u32 s18, s17, 8192")
    E("s_mov_b32 s20, 0x05040100"); E("s_mov_b32 s21, 0x07060302")
    if SL: E(f"s_sleep {SL}")
    E("s_waitcnt lgkmcnt(0)")
    for e in range(8): E(f"buffer_load_dwordx4 {vr(8+4*e,4)}, v5, s[8:11], s{17+(e>>2)} offen offset:{1024*(e&3)}")
    E("v_mul_u32_u24 v6, 144, v0")
    E("s_lshl_b32 s17, s16, 11"); E(f"s_add_u32 s17, s17, {hex(W2P)}")
    E("s_waitcnt vmcnt(0)")
    for dd in range(8):
        for ep in range(4):
            E(f"v_perm_b32 v{40+4*dd+ep}, v{8+4*(2*ep+1)+(dd>>1)}, v{8+4*(2*ep)+(dd>>1)}, s{20+(dd&1)}")
        E(f"ds_write_b128 v6, {vr(40+4*dd,4)} offset:{16*dd}")
    E("s_waitcnt lgkmcnt(0)")
    trans_store(False)
    TS(6)

class Cnt:
    def __init__(s, name, mx): s.n = name; s.l = []; s.mx = mx
    def add(s, tag): s.l.append(tag)
    def need(s, tag):
        i = max(k for k, t in enumerate(s.l) if t == tag)
        return min(s.mx, len(s.l)-1-i)
```

```python
from gen1 import *
CS = 4160
IM = int(os.environ.get("IM", "0"))
T1P = int(os.environ.get("T1P", "0")); T1 = [64] + [140+4*i for i in range(7)]
GP = int(os.environ.get("GP", "1"))
def k_conv():
    srd(8, 80, 512*1792*2); srd(12, 88, 1792*2)
    E("v_and_b32 v1, 3, v0"); E("v_lshrrev_b32 v2, 2, v0")
    E("v_mul_u32_u24 v3, 28672, v2"); E("v_lshl_add_u32 v3, v1, 4, v3")
    E("s_lshl_b32 s17, s16, 6")
    E("v_lshlrev_b32 v4, 5, v2")
    E("s_waitcnt lgkmcnt(0)")
    E(f"s_mov_b32 s18, {MOD+4*512*4}"); E(f"s_mov_b32 s19, {MOD+3*512*4}")
    for e in range(8):
        E(f"buffer_load_dwordx4 {vr(24+4*e,4)}, v3, s[8:11], s17 offen"); E("s_add_u32 s17, s17, 3584")
    E("v_and_b32 v5, 31, v0"); E("v_lshlrev_b32 v5, 1, v5"); E("s_lshl_b32 s17, s16, 6")
    E("buffer_load_ushort v7, v5, s[12:15], s17 offen")
    poll("W", 8, 9)
    TS(5)
    E("buffer_load_dwordx4 v[8:11], v4, s[4:7], s18 offen sc1"); E("buffer_load_dwordx4 v[12:15], v4, s[4:7], s18 offen offset:16 sc1")
    E("buffer_load_dwordx4 v[16:19], v4, s[4:7], s19 offen sc1"); E("buffer_load_dwordx4 v[20:23], v4, s[4:7], s19 offen offset:16 sc1")
    E("v_mul_u32_u24 v6, 144, v0")
    E("s_lshl_b32 s17, s16, 15"); E(f"s_add_u32 s17, s17, {hex(W1P)}")
    E("s_mov_b32 s20, 0x3f803f80")
    E("s_waitcnt vmcnt(2)")
    for e in range(8): E(f"v_add_f32 v{8+e}, 1.0, v{8+e}")
    for e in range(8): rnd(8+e, 8+e)
    for i in range(16): E(f"v_mov_b32 v{96+i}, 0")
    E("s_waitcnt vmcnt(0)")
    for ff in range(8):
        for e in range(8): (hi if ff & 1 else lo)(56+e, 24+4*e+(ff >> 1))
        for e in range(8): E(f"v_fmac_f32 v{104+ff}, v{56+e}, v{16+e}")
        for e in range(8): E(f"v_mul_f32 v{56+e}, v{56+e}, v{8+e}")
        for ep in range(4): E(f"v_cvt_pk_bf16_f32 v{64+4*ff+ep}, v{56+2*ep}, v{57+2*ep}")
        E(f"ds_write_b128 v6, {vr(64+4*ff,4)} offset:{16*ff}")
        for ep in range(4): E(f"v_dot2_f32_bf16 v{96+ff}, v{64+4*ff+ep}, s20, v{96+ff}")
    trans_store(True)
    E("s_barrier")
    E("v_lshlrev_b32 v4, 5, v0")
    E("ds_write_b128 v4, v[96:99]"); E("ds_write_b128 v4, v[100:103] offset:16")
    E("ds_write_b128 v4, v[104:107] offset:8192"); E("ds_write_b128 v4, v[108:111] offset:8208")
    E("s_waitcnt lgkmcnt(0)"); E("s_barrier")
    E("v_bfe_u32 v1, v0, 5, 1"); E("v_lshlrev_b32 v5, 1, v5"); E("v_lshl_add_u32 v5, v1, 13, v5")
    for i in range(64): E(f"ds_read_b32 v{8+i}, v5 offset:{128*i}")
    E("s_waitcnt lgkmcnt(0) vmcnt(8)")
    for st in (32, 16, 8, 4, 2, 1):
        for i in range(st): E(f"v_add_f32 v{8+i}, v{8+i}, v{8+i+st}")
    lo(7, 7); E("v_cvt_f32_u32 v1, v1"); E("v_fmac_f32 v8, v7, v1")
    E("s_lshl_b32 s17, s16, 7"); E(f"s_add_u32 s17, s17, {hex(S1)}")
    E("buffer_store_dword v8, v5, s[4:7], s17 offen")
    TS(7); E("s_endpgm")
    LBL("C_CV")
    U = 8*CS; TBL = U+4608; PAR = 12288
    for i in range(6): srd(32+4*i, 8+8*i, 512*128*2)
    srd(12, 56, 1024)
    E("s_load_dwordx2 s[8:9], s[0:1], 64")
    E(f"s_sub_u32 s16, s2, {B_CV}")
    E("s_lshl_b32 s17, s16, 2"); E("s_and_b32 s18, s16, 0x1fe"); E("s_lshl_b32 s18, s18, 1")
    E("v_lshlrev_b32 v1, 5, v0"); E("v_lshlrev_b32 v2, 4, v0")
    E("s_lshl_b32 s19, s16, 13"); E(f"s_add_u32 s19, s19, {hex(XT)}")
    E("s_lshl_b32 s20, s16, 8"); E("s_lshl_b32 s21, s16, 1")
    E("s_add_u32 s22, s17, 2048"); E("s_add_u32 s23, s17, 4096")
    E("v_and_b32 v73, 127, v0"); E("v_lshlrev_b32 v74, 1, v73"); E("v_mov_b32 v4, 0")
    E("s_waitcnt lgkmcnt(0)")
    for i in range(6): E(f"buffer_load_ushort v{16+i}, v74, s[{32+4*i}:{35+4*i}], s20 offen")
    E("buffer_load_ushort v22, v4, s[12:15], s21 offen")
    E("s_load_dword s27, s[8:9], s18")
    for i in range(1, 4): E(f"v_mov_b32 v{4+i}, 0")
    E("v_min_u32 v3, 29, v0"); E("v_lshlrev_b32 v3, 4, v3")
    E(f"ds_write_b128 v3, v[4:7] offset:{U}")
    E(f"ds_write_b32 v4, v4 offset:{TBL+32}")
    E("v_and_b32 v3, 7, v0"); E(f"v_mul_u32_u24 v3, {CS}, v3")
    E("v_and_b32 v64, 63, v0"); E("v_lshrrev_b32 v65, 6, v0")
    E("v_lshrrev_b32 v66, 4, v64"); E("v_bfe_u32 v67, v64, 3, 1")
    E("v_sub_u32 v68, v66, v67"); E("v_lshlrev_b32 v68, 4, v68"); E("v_add_u32 v68, v68, v3")
    E("v_lshlrev_b32 v69, 7, v65"); E("v_sub_u32 v68, v68, v69"); E(f"v_add_u32 v68, {4048-3584-64}, v68")
    E("v_and_b32 v70, 15, v64"); E("v_lshlrev_b32 v71, 5, v70"); E("v_lshl_add_u32 v71, v66, 4, v71")
    E("v_sub_u32 v69, v71, v69"); E(f"v_add_u32 v69, {U+448-64}, v69")
    E("v_lshlrev_b32 v71, 1, v71"); E("v_lshlrev_b32 v72, 4, v66"); E("v_sub_u32 v71, v71, v72"); E("v_lshl_add_u32 v71, v65, 13, v71")
    E("v_readfirstlane_b32 s29, v65")
    GA = 124
    E("v_lshlrev_b32 v23, 3, v0"); E("v_sub_u32 v23, 2047, v23"); E("v_cvt_f32_i32 v23, v23")
    for x in range(16): E(f"v_subrev_f32 v{GA+x}, {float(x)!r}, v23") if x in (0,1,2,4) else E(f"v_add_f32 v{GA+x}, {hex(__import__('struct').unpack('<I', __import__('struct').pack('<f', -float(x)))[0])}, v23")
    for x in range(0, 16, 2):
        E(f"v_cvt_pk_bf16_f32 v24, v{GA+x}, v{GA+x+1}"); lo(GA+x, 24); hi(GA+x+1, 24)
    for x in range(15): E(f"v_cvt_i32_f32 v{GA+x}, v{GA+x}")
    E("v_mov_b32 v25, 32")
    for x in range(15):
        if x >= 8: E(f"v_cmp_gt_i32 vcc, 0, v{GA+x}")
        E(f"v_lshrrev_b32 v24, 3, v{GA+x}"); E(f"v_add_lshl_u32 v{GA+x}, v{GA+x}, v24, 2")
        if x >= 8: E(f"v_cndmask_b32 v{GA+x}, v{GA+x}, v25, vcc")
    E("s_waitcnt vmcnt(0)")
    for i in range(7): lo(16+i, 16+i)
    E("v_mul_f32 v22, 0x3fb8aa3b, v22"); E("v_exp_f32 v22, v22"); E("s_nop 0"); rnd(22, 22)
    E("v_mul_f32 v24, v22, v16"); E("v_mul_f32 v24, 0x3fb8aa3b, v24")
    E("v_mul_f32 v25, v22, v17"); E("v_mul_f32 v25, 0.15915494, v25")
    E("v_mul_f32 v18, v22, v18"); E("v_mul_f32 v19, v22, v19")
    E("v_mul_f32 v26, v20, v18"); E("v_fma_f32 v26, -v21, v19, v26")
    E("v_mul_f32 v27, v20, v19"); E("v_fmac_f32 v27, v21, v18")
    RS = 528
    E("v_lshlrev_b32 v73, 2, v73")
    def cexp(d, l):
        E(f"v_mul_f32 v20, {l}, v24"); E(f"v_mul_f32 v21, {l}, v25"); E("v_exp_f32 v20, v20"); E("v_fract_f32 v21, v21")
        E("s_nop 0"); E(f"v_cos_f32 v{d}, v21"); E(f"v_sin_f32 v{d+1}, v21"); E("s_nop 0")
        E(f"v_mul_f32 v{d}, v{d}, v20"); E(f"v_mul_f32 v{d+1}, v{d+1}, v20")
    def cmul(d, x, y):
        E(f"v_pk_mul_f32 v[22:23], {vr(x,2)}, {vr(y,2)} op_sel:[0,0] op_sel_hi:[1,0]")
        E(f"v_pk_fma_f32 {vr(d,2)}, {vr(x,2)}, {vr(y,2)}, v[22:23] op_sel:[1,1,0] op_sel_hi:[0,1,1] neg_lo:[1,0,0]")
    tmp = [0]
    def put(row, x, neg=False):
        t = 104 + (tmp[0] % 8); tmp[0] += 1
        E(f"v_cvt_pk_bf16_f32 v{t}, v{x}, {'-' if neg else ''}v{x+1}"); E(f"ds_write_b32 v73, v{t} offset:{RS*row}")
    cexp(32, "0x43000000")
    E("s_cmp_lt_u32 s29, 2"); E("s_cbranch_scc1 C_H0")
    cexp(34, "4.0")
    E("v_mov_b32 v36, 0x3f80"); E("ds_write_b32 v73, v36")
    put(1, 32); put(16, 34)
    cur = 32
    for i in range(1, 17):
        if i >= 2:
            nxt = 36 + 2*(i & 1); cmul(nxt, cur, 32); cur = nxt; put(i if i < 16 else 40, cur)
        if i < 8:
            cmul(40, cur, 34); put(16 + 4*(i & 3) + (i >> 2), 40)
    E("s_branch C_HJ")
    LBL("C_H0")
    cexp(34, "0x41000000"); cexp(42, "1.0")
    put(41, 26, True); cur = 26
    for j in range(1, 16):
        nxt = 36 + 2*(j & 1); cmul(nxt, cur, 34); cur = nxt; put(41+j, cur, True)
        if j == 1: cmul(44, 42, 42)
        if j == 2: cmul(46, 44, 42); cmul(48, 44, 44)
        if j == 3: cmul(50, 48, 42); cmul(52, 48, 44); cmul(54, 48, 46)
        if j == 4: cmul(56, 32, 32)
        if j == 5: cmul(58, 56, 32)
    for r in range(4):
        put(32+r, 42+4*r); cmul(60, 42+4*r, 32); put(36+r, 60)
    for r, e in ((2, 44), (3, 52)):
        put(16+r, e)
        for g, t in ((1, 32), (2, 56), (3, 58)):
            cmul(60, e, t); put(16+4*g+r, 60)
    LBL("C_HJ")
    E("s_waitcnt lgkmcnt(0)")
    E("s_and_b32 s28, s16, 1"); E("s_lshl_b32 s28, s28, 4"); E("s_lshr_b32 s27, s27, s28"); E("s_lshl_b32 s27, s27, 16")
    E("s_barrier"); TS(3)
    E(f"v_mul_u32_u24 v73, {RS}, v70"); E("v_lshl_add_u32 v73, v66, 4, v73")
    E(f"s_mul_i32 s30, s29, {16*RS}"); E("v_add_u32 v74, s30, v73")
    if GP: E("s_cmp_eq_u32 s29, 3"); E("s_cbranch_scc1 C_T3")
    else:
        E("s_cmp_eq_u32 s29, 3"); E("s_cbranch_scc0 C_SK")
        E("s_mov_b64 exec, 1"); poll("C", 28, 30)
        E("s_mov_b64 exec, -1"); TS(5); E("s_branch C_T3")
    LBL("C_SK")
    for k in range(8):
        E(f"ds_read_b128 {vr(32+8*k,4)}, v74 offset:{64*k}") if k < 4 else E(f"ds_read_b128 {vr(44+8*k,4)}, v74 offset:{64*k}")
        E(f"ds_read_b128 {vr(36+8*k,4)}, v73 offset:{41*RS+64*k}") if k < 4 else E(f"ds_read_b128 {vr(48+8*k,4)}, v73 offset:{41*RS+64*k}")
    E("v_mul_u32_u24 v28, 36, v70"); E("v_mul_u32_u24 v30, 576, v66"); E("v_add_u32 v30, v30, v28")
    E("v_lshlrev_b32 v31, 2, v66"); E("v_add_u32 v31, 9204, v31"); E("v_add_u32 v31, v31, v28")
    E("v_cmp_lt_u32 vcc, 1, v66"); E("v_mul_u32_u24 v29, 2304, v66"); E("v_add_u32 v29, v29, v28"); E("v_cndmask_b32 v31, v30, v31, vcc")
    E("s_waitcnt lgkmcnt(0)")
    for k in range(8):
        b = 32+8*k if k < 4 else 44+8*k
        E(f"v_mfma_f32_16x16x32_bf16 v[16:19], {vr(b,4)}, {vr(b+4,4)}, " + ("0" if k == 0 else "v[16:19]"))
    E("s_nop 7")
    E("s_cmp_eq_u32 s29, 1"); E("s_cbranch_scc1 C_T1"); E("s_cmp_eq_u32 s29, 2"); E("s_cbranch_scc1 C_T2")
    for r in range(4): E(f"ds_write_b32 v29, v{16+r} offset:{TBL+576*r}")
    E("s_branch C_T3")
    LBL("C_T1")
    for r in range(4): E(f"ds_write_b32 v30, v{16+r} offset:{TBL+4*[4,580,2,6][r]}")
    E("s_branch C_T3")
    LBL("C_T2")
    for r in range(4): E(f"ds_write_b32 v31, v{16+r} offset:{TBL+4*(1+2*r)}")
    LBL("C_T3")
    E("s_waitcnt lgkmcnt(0)"); E("s_barrier"); TS(4)
    def xld():
        E("buffer_load_dwordx4 v[8:11], v1, s[4:7], s19 offen sc1"); E("buffer_load_dwordx4 v[12:15], v1, s[4:7], s19 offen offset:16 sc1")
        for i, sr in enumerate((17, 22, 23)): E(f"buffer_load_dword v{28+i}, v4, s[4:7], s{sr} offen sc1")
    if not GP: xld()
    for x in range(15): E(f"ds_read_b32 v{32+x}, v{GA+x} offset:{TBL}")
    E("ds_write_b128 v3, v[4:7] offset:4096")
    E("s_waitcnt lgkmcnt(1)")
    for p in range(2):
        for a in range(2):
            for k in range(a, 6+a): E(f"v_cvt_pk_bf16_f32 v{76+8*(2*p+a)+k-a}, v{32+2*k+p}, v{33+2*k+p}")
    for c in range(8):
        sft = 7-c; p = sft & 1; st = sft >> 1; a = st & 1
        E(f"ds_write_b128 v2, {vr(76+8*(2*p+a)+st-a,4)} offset:{CS*c}")
    if GP:
        E("s_cmp_eq_u32 s29, 3"); E("s_cbranch_scc0 C_G1")
        E("s_mov_b64 exec, 1"); poll("C", 28, 30)
        E("s_mov_b64 exec, -1"); TS(5)
        LBL("C_G1")
        E("s_waitcnt lgkmcnt(0)"); E("s_barrier")
        xld()
        for q in range(8): E(f"ds_read_b128 {vr(76+4*q,4)}, v68 offset:{64+(7-q)*512}")
        if T1P:
            for q in range(7): E(f"ds_read_b128 {vr(T1[q],4)}, v68 offset:{(7-q)*512}")
            E("s_waitcnt lgkmcnt(8)"); E(f"ds_read_b128 {vr(T1[7],4)}, v68 offset:0")
    E("s_waitcnt vmcnt(0)")
    E("v_add_f32 v72, 1.0, v29"); rnd(72, 72); E("v_readfirstlane_b32 s26, v30")
    for e in range(8): lo(16+e, 8+e)
    for e in range(8): E(f"v_mul_f32 v{16+e}, v{16+e}, v72")
    for e in range(0, 8, 2):
        E(f"v_cvt_pk_bf16_f32 v24, v{16+e}, v{17+e}"); lo(16+e, 24); hi(17+e, 24)
    for e in range(8): E(f"v_add_f32 v{16+e}, v28, v{16+e}")
    for e in range(0, 8, 2): E(f"v_cvt_pk_bf16_f32 v{24+e//2}, v{16+e}, v{17+e}")
    E(f"ds_write_b128 v2, v[24:27] offset:{U+480}")
    E("s_waitcnt lgkmcnt(0)"); E("s_barrier")
    TS(1)
    T0, B0, AC = 76, 108, 32
    if IM:
        rb = lambda s, q: E(f"ds_read_b128 {vr(B0+4*q,4)}, v69 offset:{64*(1-s)+512*q}")
        for q in range(8): rb(0, q)
        for s in range(2):
            for i in range(8):
                E(f"s_waitcnt lgkmcnt({(7-i)+max(i-1,0) if s == 0 else 7-i})")
                for q in range(8-i):
                    c = "0" if (s == 0 and i == 0) else vr(AC+4*(q+i), 4)
                    E(f"v_mfma_f32_16x16x32_bf16 {vr(AC+4*(q+i),4)}, {vr(T1[q] if s else T0+4*q,4)}, {vr(B0+4*i,4)}, {c}")
                if s == 0 and i >= 1: rb(1, i-1)
            if s == 0: E("s_nop 3"); rb(1, 7)
    for s in range(0 if IM else 2):
        o = 64*(1-s)
        for q in range(8):
            if not (GP and (s == 0 or T1P)): E(f"ds_read_b128 {vr(T0+4*q,4)}, v68 offset:{o+(7-q)*512}")
            E(f"ds_read_b128 {vr(B0+4*q,4)}, v69 offset:{o+512*q}")
        done = set()
        for n in range(8):
            E(f"s_waitcnt lgkmcnt({(7-n) if (GP and (s == 0 or T1P)) else 2*(7-n)})")
            for q in range(n+1):
                for i in range(n+1):
                    if (q == n or i == n) and q+i <= 7:
                        J = q+i
                        c = "0" if (s == 0 and J not in done) else vr(AC+4*J, 4)
                        done.add(J)
                        E(f"v_mfma_f32_16x16x32_bf16 {vr(AC+4*J,4)}, {vr(T1[q] if (T1P and s == 1) else T0+4*q,4)}, {vr(B0+4*i,4)}, {c}")
    TS(2); E("s_barrier"); E("s_nop 7")
    for J in range(8): E(f"ds_write_b128 v71, {vr(AC+4*J,4)} offset:{1024*J}")
    E("s_waitcnt lgkmcnt(0)"); E("s_barrier")
    for w in range(4):
        E(f"ds_read_b128 {vr(32+8*w,4)}, v1 offset:{8192*w}"); E(f"ds_read_b128 {vr(36+8*w,4)}, v1 offset:{8192*w+16}")
    for e in range(0, 8, 2): lo(16+e, 24+e//2); hi(17+e, 24+e//2)
    for e in range(8): E(f"v_mul_f32 v{16+e}, s27, v{16+e}")
    def rnd8(b):
        for e in range(0, 8, 2):
            E(f"v_cvt_pk_bf16_f32 v28, v{b+e}, v{b+1+e}"); lo(b+e, 28); hi(b+1+e, 28)
    rnd8(16)
    for e in range(8): hi(8+e, 8+e)
    E("s_waitcnt lgkmcnt(0)")
    for e in range(8):
        E(f"v_add_f32 v{32+e}, v{32+e}, v{40+e}"); E(f"v_add_f32 v{48+e}, v{48+e}, v{56+e}")
    for e in range(8): E(f"v_add_f32 v{32+e}, v{32+e}, v{48+e}")
    rnd8(32)
    for e in range(8): E(f"v_add_f32 v{32+e}, v{32+e}, v{16+e}")
    rnd8(32)
    for e in range(8): E(f"v_mul_f32 v{32+e}, s26, v{32+e}")
    rnd8(32)
    for e in range(8): E(f"v_add_f32 v{32+e}, v{32+e}, v{8+e}")
    for e in range(0, 8, 2): E(f"v_cvt_pk_bf16_f32 v{24+e//2}, v{32+e}, v{33+e}")
    E("s_lshl_b32 s19, s16, 12"); E(f"s_add_u32 s19, s19, {hex(X1T)}")
    E("buffer_store_dwordx4 v[24:27], v2, s[4:7], s19 offen")
    TS(7); E("s_endpgm")
```
